```python
import torch

def _softmax(x, axis=-1):
    return torch.softmax(x, dim=axis)
def _gelu(x):
    return torch.nn.functional.gelu(x, approximate="tanh")
def _silu(x):
    return torch.nn.functional.silu(x)
def _sigmoid(x):
    return torch.sigmoid(x)
def _layernorm(x, axis=-1, eps=1e-5):
    m = x.mean(dim=axis, keepdim=True)
    v = x.var(dim=axis, keepdim=True, unbiased=False)
    return (x - m) / torch.sqrt(v + eps)
def _scatter_add(tgt, idx, src, axis=0):
    return tgt.clone().index_add_(axis, idx, src)
def _segment_sum(src, seg, n):
    out = torch.zeros((n,) + src.shape[1:], dtype=src.dtype)
    return out.index_add_(0, seg, src)
def _pad(x, pw):
    flat = tuple(v for pair in reversed(pw) for v in pair)
    return torch.nn.functional.pad(x, flat)

kernel_name = 'concat_heads__ssm_conv_h3__spectral_fnet__prompt'

def setup_inputs():

    _w = (lambda a: (lambda t: t.to(torch.bfloat16) if t.is_floating_point() else t)(torch.as_tensor(a)))
    def _A_setup():
        B, S, D = 1, 2048, 576
        ks = 4
        return {
            "q": _w((lambda *s: torch.randn(*s, dtype=torch.bfloat16) * 0.05)(B, S, D)),
            "k": _w((lambda *s: torch.randn(*s, dtype=torch.bfloat16) * 3.2)(B, S, D)),
            "v": _w((lambda *s: torch.randn(*s, dtype=torch.bfloat16) * 3.2)(B, S, D)),
            "shift_k": _w((lambda *s: torch.randn(*s, dtype=torch.bfloat16) * 3.2)(D, ks) * 0.5),
            "ssm_k": _w((lambda *s: torch.randn(*s, dtype=torch.bfloat16) * 3.2)(D, S) * (1.0 / S ** 0.5)),
            "ssm_D": _w((lambda *s: torch.randn(*s, dtype=torch.bfloat16) * 3.2)(D)),
        }
    _A_in = _A_setup()

    def _B_setup():
        B, S, D = 1, 2048, 576
        ns = torch.arange(S)[:, None] * torch.arange(S)[None, :]
        nd = torch.arange(D)[:, None] * torch.arange(D)[None, :]
        Ws_re = torch.cos(-2.0 * torch.pi * ns / S).to(float)
        Ws_im = torch.sin(-2.0 * torch.pi * ns / S).to(float)
        Wd_re = torch.cos(-2.0 * torch.pi * nd / D).to(float)
        Wd_im = torch.sin(-2.0 * torch.pi * nd / D).to(float)
        return {
            "x": _w((lambda *s: torch.randn(*s, dtype=torch.bfloat16) * 0.05)(B, S, D)),
            "dft_seq_re": _w(Ws_re),
            "dft_seq_im": _w(Ws_im),
            "dft_hid_re": _w(Wd_re),
            "dft_hid_im": _w(Wd_im),
        }
    _B_in = _B_setup()

    return {
        "A_q": _A_in["q"],
        "A_k": _A_in["k"],
        "A_v": _A_in["v"],
        "A_shift_k": _A_in["shift_k"],
        "A_ssm_k": _A_in["ssm_k"],
        "A_ssm_D": _A_in["ssm_D"],
        "B_x": _B_in["x"],
        "B_dft_seq_re": _B_in["dft_seq_re"],
        "B_dft_seq_im": _B_in["dft_seq_im"],
        "B_dft_hid_re": _B_in["dft_hid_re"],
        "B_dft_hid_im": _B_in["dft_hid_im"],
    }

def reference(A_q, A_k, A_v, A_shift_k, A_ssm_k, A_ssm_D, B_x, B_dft_seq_re, B_dft_seq_im, B_dft_hid_re, B_dft_hid_im):
    def _A_ref(q, k, v, shift_k, ssm_k, ssm_D):
        B, S, D = q.shape
        ks = shift_k.shape[-1]
        k_pad = _pad(k, ((0, 0), (ks - 1, 0), (0, 0)))
        k_shift = torch.zeros_like(k)
        for t in range(ks):
            k_shift = k_shift + k_pad[:, t:t + S, :] * shift_k[:, ks - 1 - t][None, None, :]
        kv = k_shift * v
        L = 2 * S
        kv_pad = _pad(kv, ((0, 0), (0, S), (0, 0)))
        kf_pad = _pad(ssm_k, ((0, 0), (0, S)))
        kv_f = (lambda x, axes=(-2,-1): torch.fft.rfft2(x.float(), dim=axes))(kv_pad[:, None, :, :], axes=(1, 2))
        kf_f = (lambda x, axes=(-2,-1): torch.fft.rfft2(x.float(), dim=axes))(kf_pad[:, None, :], axes=(1, 2))
        kf_f = (lambda x, *d: x.permute(*d))(kf_f, 1, 2, 0)
        y_f = kv_f * kf_f[None, :, :, :]
        y = (lambda x, s, axes=(-2,-1): torch.fft.irfft2(x, s=s, dim=axes).to(torch.bfloat16))(y_f, (1, L), axes=(1, 2))[:, 0, :S, :]
        y = y + kv * ssm_D[None, None, :]
        return q * y

    def _B_ref(x, dft_seq_re, dft_seq_im, dft_hid_re, dft_hid_im):
        a = torch.einsum("bsd,ed->bse", x, dft_hid_re)
        b = torch.einsum("bsd,ed->bse", x, dft_hid_im)
        y = torch.einsum("ts,bse->bte", dft_seq_re, a) - torch.einsum("ts,bse->bte", dft_seq_im, b)
        return y

    a = _A_ref(A_q, A_k, A_v, A_shift_k, A_ssm_k, A_ssm_D)
    b = _B_ref(B_x, B_dft_seq_re, B_dft_seq_im, B_dft_hid_re, B_dft_hid_im)
    return torch.concatenate([a, b], axis=-1)
```

```python
import re

TRANS = ("v_exp_", "v_log_", "v_rcp_", "v_rsq_", "v_sqrt_", "v_sin_", "v_cos_")
REG = re.compile(r"\b([vsa])(\d+)\b|\b([vsa])\[(\d+):(\d+)\]|\b(vcc|exec|m0|scc)\b")

def regs_of(tok):
    out = []
    for m in REG.finditer(tok):
        if m.group(1):
            out.append(m.group(1) + m.group(2))
        elif m.group(3):
            out += [m.group(3) + str(i) for i in range(int(m.group(4)), int(m.group(5)) + 1)]
        else:
            out.append(m.group(6))
    return out

def split_ops(rest):
    ops, depth, cur = [], 0, ""
    for ch in rest:
        if ch == "[": depth += 1
        if ch == "]": depth -= 1
        if ch == "," and depth == 0:
            ops.append(cur.strip()); cur = ""
        else:
            cur += ch
    if cur.strip(): ops.append(cur.strip())
    return ops

class Ins:
    def __init__(self, text):
        self.text = text
        t = text.split(";")[0].strip()
        self.is_label = t.endswith(":")
        self.is_dir = t.startswith(".") and not self.is_label
        self.op = t.split()[0] if t else ""
        rest = t[len(self.op):]
        rest = re.sub(r"\b(op_sel|op_sel_hi|neg_lo|neg_hi):\[[^\]]*\]", "", rest)
        ops = split_ops(rest)
        self.ops = ops
        op = self.op
        self.kind = "other"; self.defs = []; self.uses = []; self.srcc = []; self.srcab = []; self.data = []
        if self.is_label or self.is_dir or not op:
            self.kind = "none"; return
        if op.startswith("v_mfma"):
            self.kind = "mfma"
            self.defs = regs_of(ops[0]); self.srcab = regs_of(ops[1]) + regs_of(ops[2]); self.srcc = regs_of(ops[3])
            self.uses = self.srcab + self.srcc
            self.passes = 8 if "32x32x16" in op else 4
        elif op.startswith("v_"):
            self.kind = "valu"
            self.trans = op.startswith(TRANS)
            if op.startswith("v_cmp"):
                self.defs = regs_of(ops[0]); self.uses = sum((regs_of(o) for o in ops[1:]), [])
            elif op.startswith(("v_add_co", "v_sub_co", "v_addc_co", "v_subb_co")):
                self.defs = regs_of(ops[0]) + regs_of(ops[1]); self.uses = sum((regs_of(o) for o in ops[2:]), [])
            elif op.startswith("v_permlane"):
                self.defs = regs_of(ops[0]) + regs_of(ops[1]); self.uses = list(self.defs)
            else:
                self.defs = regs_of(ops[0]); self.uses = sum((regs_of(o) for o in ops[1:]), [])
                if op.startswith(("v_fmac", "v_dot2c", "v_writelane")) or "dpp" in op or "row_" in t or "sdwa" in op:
                    self.uses += self.defs
        elif op.startswith("ds_"):
            self.kind = "ds"
            if op.startswith(("ds_read", "ds_bpermute", "ds_permute", "ds_swizzle")):
                self.defs = regs_of(ops[0]); self.uses = sum((regs_of(o) for o in ops[1:]), [])
            else:
                self.uses = sum((regs_of(o) for o in ops), [])
        elif op.startswith(("global_", "buffer_", "flat_")):
            self.kind = "vmem"
            if "store" in op or ("atomic" in op and " sc0" not in t):
                self.uses = sum((regs_of(o) for o in ops), [])
                if op.endswith(("x3", "x4")):
                    self.data = regs_of(ops[1] if op.startswith("global") else ops[0])
            elif op in ("buffer_inv", "buffer_wbl2"):
                pass
            elif " lds" in t or "load_lds" in op:
                self.uses = sum((regs_of(o) for o in ops), []) + ["m0"]
            else:
                self.defs = regs_of(ops[0]); self.uses = sum((regs_of(o) for o in ops[1:]), [])
        elif op.startswith("s_"):
            self.kind = "salu"
            if op.startswith(("s_cmp", "s_cbranch", "s_branch", "s_waitcnt", "s_barrier", "s_nop", "s_sleep", "s_setprio", "s_endpgm", "s_bitcmp")):
                self.uses = sum((regs_of(o) for o in ops), [])
            else:
                self.defs = regs_of(ops[0]) if ops else []; self.uses = sum((regs_of(o) for o in ops[1:]), [])
                if "saveexec" in op: self.defs += ["exec"]
    def states(self):
        if self.kind == "none": return 0
        if self.op == "s_nop": return int(self.ops[0], 0) + 1
        return 1

def need(prev, cur):
    n = 0
    pd, cu, cd = set(prev.defs), set(cur.uses), set(cur.defs)
    if prev.kind == "valu":
        vd = {r for r in pd if r[0] in "va" and r != "vcc"}
        sd = {r for r in pd if r[0] == "s" or r == "vcc"}
        if cur.kind == "mfma" and vd & cu: n = max(n, 2)
        if cur.kind == "valu":
            if prev.trans and not cur.trans and vd & cu: n = max(n, 1)
            if cur.op.startswith(("v_readlane", "v_readfirstlane")) and vd & cu: n = max(n, 1)
            if cur.op.startswith("v_permlane") and vd & cu: n = max(n, 2)
            if ("dpp" in cur.op or "row_" in cur.text) and vd & cu: n = max(n, 2)
            if sd & cu: n = max(n, 4 if cur.op.startswith(("v_readlane", "v_writelane")) else 2)
            if ("sdwa" in prev.op) and vd & cu: n = max(n, 1)
        if cur.kind == "vmem" and sd & cu: n = max(n, 5)
        if cur.kind == "salu" and sd & cu: n = max(n, 1)
        if "exec" in pd and cur.kind == "mfma": n = max(n, 4)
    if prev.kind == "mfma":
        big = 8 if prev.passes == 4 else 12
        if cur.kind == "mfma":
            if pd & set(cur.srcab): n = max(n, big)
            if pd & set(cur.srcc) and prev.defs != cur.srcc: n = max(n, 6 if prev.passes == 4 else 10)
            if pd & cd and prev.defs != cur.srcc: n = max(n, big)
        elif cur.kind in ("valu", "ds", "vmem"):
            if pd & (cu | cd): n = max(n, big)
        if cur.kind == "valu" and set(prev.srcc) & cd: n = max(n, 3 if prev.passes == 4 else 7)
    if prev.kind == "vmem" and prev.data:
        if set(prev.data) & cd: n = max(n, 2 if cur.kind == "valu" else 1)
    if prev.kind == "salu" and "m0" in pd and cur.kind == "vmem" and "m0" in cu: n = max(n, 1)
    return n

def pad(lines):
    out = []
    for ln in lines:
        ins = Ins(ln)
        if ins.kind != "none":
            dist = 0; req = 0
            for p in reversed(out):
                if dist >= 13: break
                if p.kind == "none": continue
                r = need(p, ins) - dist
                if r > req: req = r
                dist += p.states()
            while req > 0:
                k = min(req, 16)
                out.append(Ins(f"s_nop {k-1}")); req -= k
        out.append(ins)
    return [i.text for i in out]

class Asm:
    def __init__(self):
        self.lines = []
    def __call__(self, s):
        for ln in s.split("\n"):
            ln = ln.strip()
            if ln: self.lines.append(ln)
    def text(self):
        res = []
        for ln in pad(self.lines):
            if ln.endswith(":") or ln.startswith((".", ";")): res.append(ln)
            else: res.append("    " + ln)
        return "\n".join(res) + "\n"

def vr(a, n=1):
    return f"v{a}" if n == 1 else f"v[{a}:{a+n-1}]"
def sr(a, n=1):
    return f"s{a}" if n == 1 else f"s[{a}:{a+n-1}]"
```

```python
import sys, math, struct
from asmlib import Asm, vr, sr

NAME = "concat_heads__ssm_conv_h3__spectral_fnet__prompt"
NWG = 225
KVOFF = 0
VOFF = 0x240000
FLAGOFF = 0x500000
STAMPOFF = 0x600000
WSBYTES = 268435456
CS = 16944
KVL = 12288
L1, L2, L3, L4 = 0, 36864, 78080, 0
LDS_BYTES = 8 * CS

def f32(x): return "0x%08x" % struct.unpack("<I", struct.pack("<f", x))[0]

S_WAVE, S_J = 6, 7
Q, K, V, SH, H, DD, X, OUT, DBG, WS = 8, 10, 12, 14, 16, 18, 20, 30, 32, 34
SRD_K, SRD_V, SRD_H, SRD_WS = 36, 40, 44, 56

class G:
    def __init__(self, mode="fused", stamps=False, opt=None):
        self.a = Asm(); self.mode = mode; self.stamps = stamps; self.opt = opt or {}
        self.nlab = 0
    def lab(self, p="L"):
        self.nlab += 1; return f"{p}_{self.nlab}"
    def stamp(self, i):
        if self.stamps:
            self.a(f"s_memrealtime s[{80+2*i}:{81+2*i}]\ns_waitcnt lgkmcnt(0)")
    def dump_stamps(self, slot):
        a = self.a
        if not self.stamps: return
        L = self.lab("Lst")
        a("s_waitcnt vmcnt(0)")
        self.stamp(7)
        a(f"s_cmp_lg_u32 s{S_WAVE}, 0\ns_cbranch_scc1 {L}")
        for i in range(8): a(f"v_mov_b32 v{2+i}, s{80+2*i}")
        a(f"s_lshl_b32 s3, s2, 5\ns_add_u32 s3, s3, {STAMPOFF + slot*8192}\nv_mov_b32 v10, s3\ns_mov_b64 exec, 1")
        a(f"global_store_dwordx4 v10, v[2:5], {sr(WS,2)}\nglobal_store_dwordx4 v10, v[6:9], {sr(WS,2)} offset:16")
        a(f"{L}:")

    def prologue(self, kname, endlab, codebytes):
        a = self.a
        a(f".globl {kname}\n.p2align 8\n.type {kname},@function\n{kname}:")
        a(f"s_load_dwordx16 s[8:23], s[0:1], 0\ns_load_dwordx8 s[24:31], s[0:1], 64\ns_load_dwordx4 s[32:35], s[0:1], 96")
        if self.stamps:
            for i in range(8): a(f"s_mov_b32 s{80+2*i}, 0")
            a("s_memrealtime s[80:81]")
        a(f"s_cmp_ge_u32 s2, {NWG}\ns_cbranch_scc1 {endlab}")
        a(f"s_getpc_b64 s[4:5]\nv_lshlrev_b32 v2, 7, v0\nv_min_u32 v2, {codebytes}, v2\nglobal_load_dword v255, v2, s[4:5]")
        a(f"v_lshrrev_b32 v2, 6, v0\nv_and_b32 v1, 63, v0\nv_readfirstlane_b32 s{S_WAVE}, v2")
        a(f"s_mov_b32 s{SRD_K+2}, 2359296\ns_mov_b32 s{SRD_K+3}, 0x20000\ns_mov_b32 s{SRD_V+2}, 2359296\ns_mov_b32 s{SRD_V+3}, 0x20000")
        a(f"s_mov_b32 s{SRD_H+2}, 2359296\ns_mov_b32 s{SRD_H+3}, 0x20000\ns_mov_b32 s{SRD_WS+2}, {WSBYTES}\ns_mov_b32 s{SRD_WS+3}, 0x20000")
        a("s_lshr_b32 s3, s2, 3\ns_and_b32 s48, s2, 7")
    def ptr_wait(self):
        a = self.a
        a("s_waitcnt lgkmcnt(0)")
        a(f"s_mov_b64 {sr(SRD_K,2)}, {sr(K,2)}\ns_mov_b64 {sr(SRD_V,2)}, {sr(V,2)}\ns_mov_b64 {sr(SRD_H,2)}, {sr(H,2)}\ns_mov_b64 {sr(SRD_WS,2)}, {sr(WS,2)}")

    def wait_go(self):
        a = self.a; L = self.lab("Lgo"); E = self.lab("Lgox")
        a(f"v_mov_b32 v12, 0\ns_mov_b32 s49, 0\n{L}:\nglobal_load_dword v13, v12, {sr(DBG,2)} sc0 sc1\ns_waitcnt vmcnt(0)")
        a(f"v_cmp_eq_u32 vcc, 0, v13\ns_add_u32 s49, s49, 1\ns_cmp_gt_u32 s49, 0x100000\ns_cbranch_scc1 {E}\ns_cbranch_vccnz {L}\n{E}:")
    def publish(self, sflag):
        a = self.a; L = self.lab("Lpub")
        a(f"s_barrier\ns_cmp_lg_u32 s{S_WAVE}, 0\ns_cbranch_scc1 {L}")
        self.wait_go()
        a(f"s_lshl_b32 s49, s{sflag}, 7\ns_add_u32 s49, s49, {FLAGOFF}\nv_mov_b32 v12, s49\nv_mov_b32 v13, 1\ns_mov_b64 exec, 1")
        a(f"global_store_dword v12, v13, {sr(WS,2)} sc0 sc1\ns_mov_b64 exec, -1\n{L}:")
    def poll(self, sfirst, nflags, need_go):
        a = self.a; L = self.lab("Lpoll"); E = self.lab("Lpollx")
        a(f"s_cmp_lg_u32 s{S_WAVE}, 0\ns_cbranch_scc1 {E}")
        if need_go: self.wait_go()
        a(f"v_and_b32 v12, {nflags-1}, v1\nv_add_u32 v12, s{sfirst}, v12\nv_lshlrev_b32 v12, 7, v12\nv_add_u32 v12, {FLAGOFF}, v12\ns_mov_b32 s49, 0")
        a(f"{L}:\nglobal_load_dword v13, v12, {sr(WS,2)} sc0 sc1\ns_waitcnt vmcnt(0)")
        a(f"v_cmp_ne_u32 vcc, 1, v13\ns_add_u32 s49, s49, 1\ns_cmp_gt_u32 s49, 0x100000\ns_cbranch_scc1 {E}\ns_cbranch_vccnz {L}\n{E}:\ns_barrier")

    HRAW = 32
    def a_h_loads(self):
        a = self.a
        a(f"s_lshr_b32 s50, s{S_J}, 1\ns_lshl_b32 s50, s50, 3\ns_add_u32 s50, s50, s{S_WAVE}")
        a(f"s_lshl_b32 s51, s50, 12\nv_lshlrev_b32 v8, 4, v1\nv_and_b32 v9, 48, v8")
        a(f"s_and_b32 s52, s50, -2\ns_lshl_b32 s52, s52, 1\ns_load_dword s53, {sr(DD,2)}, s52")
        nt = self.opt.get("h_nt", "")
        a(f"buffer_load_dwordx4 v[68:71], v9, {sr(SRD_H,4)}, s51 offen")
        for p in range(4):
            a(f"buffer_load_dword v{64+p}, v8, {sr(SRD_H,4)}, s51 offen offset:{32+1024*p} {nt}")
            a(f"buffer_load_dwordx4 {vr(32+8*p,4)}, v8, {sr(SRD_H,4)}, s51 offen offset:{36+1024*p} {nt}")
            a(f"buffer_load_dwordx4 {vr(36+8*p,4)}, v8, {sr(SRD_H,4)}, s51 offen offset:{40+1024*p} {nt}")
        return 13
    def a_p1_loads(self):
        a = self.a
        nt = self.opt.get("kv_nt", "nt")
        a(f"s_lshr_b32 s48, s{S_J}, 4\ns_and_b32 s49, s{S_J}, 15\ns_lshl_b32 s50, s49, 3\ns_add_u32 s50, s50, s{S_WAVE}")
        a(f"s_mul_i32 s51, s50, {16*1152}\ns_lshl_b32 s52, s48, 7\ns_add_u32 s51, s51, s52\ns_movk_i32 s54, 4608")
        a("v_lshrrev_b32 v2, 5, v1\nv_and_b32 v7, 31, v1\nv_mul_u32_u24 v4, 9216, v2\nv_lshl_add_u32 v4, v7, 2, v4\nv_add_u32 v4, s51, v4\nv_add_u32 v5, 0xfffff280, v4")
        a("s_lshl_b32 s52, s48, 9\nv_lshlrev_b32 v6, 4, v7\nv_add_u32 v6, s52, v6")
        self.ptr_wait()
        a(f"global_load_dwordx4 v[128:131], v6, {sr(SH,2)}")
        for i in range(3):
            a(f"buffer_load_dword v{132+i}, v5, {sr(SRD_K,4)}, 0 offen offset:{1152*i} {nt}")
        for t in range(8):
            so = "0" if t < 4 else "s54"
            a(f"buffer_load_dword v{135+t}, v4, {sr(SRD_K,4)}, {so} offen offset:{1152*(t&3)} {nt}")
            a(f"buffer_load_dword v{143+t}, v4, {sr(SRD_V,4)}, {so} offen offset:{1152*(t&3)} {nt}")
        a(f"s_lshl_b32 s52, s48, 18\ns_lshl_b32 s50, s50, 8\ns_add_u32 s52, s52, s50\nv_lshrrev_b32 v6, 2, v7\nv_lshlrev_b32 v6, 15, v6")
        a("v_and_b32 v7, 3, v7\nv_lshlrev_b32 v7, 4, v7\nv_lshl_add_u32 v7, v2, 6, v7\nv_add3_u32 v6, v6, v7, s52")
    def a_p1_compute(self, nh):
        a = self.a
        W, KF, VF, U, O = 152, 160, 182, 184, 200
        def unpack(dst, src):
            a(f"v_lshlrev_b32 v{dst}, 16, v{src}\nv_and_b32 v{dst+1}, 0xffff0000, v{src}")
        a(f"s_waitcnt vmcnt({16+nh})")
        a(f"v_lshlrev_b32 v{W}, 16, v128\nv_lshlrev_b32 v{W+1}, 16, v130\nv_and_b32 v{W+2}, 0xffff0000, v128\nv_and_b32 v{W+3}, 0xffff0000, v130")
        a(f"v_lshlrev_b32 v{W+4}, 16, v129\nv_lshlrev_b32 v{W+5}, 16, v131\nv_and_b32 v{W+6}, 0xffff0000, v129\nv_and_b32 v{W+7}, 0xffff0000, v131")
        for i in range(3): unpack(KF + 2 * i, 132 + i)
        for t in range(8):
            u = U + 2 * t
            a(f"v_pk_mul_f32 {vr(u,2)}, {vr(W+6,2)}, {vr(KF+2*t,2)}")
            a(f"v_pk_fma_f32 {vr(u,2)}, {vr(W+4,2)}, {vr(KF+2*t+2,2)}, {vr(u,2)}")
            a(f"v_pk_fma_f32 {vr(u,2)}, {vr(W+2,2)}, {vr(KF+2*t+4,2)}, {vr(u,2)}")
            a(f"s_waitcnt vmcnt({2*(7-t)+nh})")
            unpack(KF + 2 * t + 6, 135 + t)
            unpack(VF, 143 + t)
            a(f"v_pk_fma_f32 {vr(u,2)}, {vr(W,2)}, {vr(KF+2*t+6,2)}, {vr(u,2)}")
            a(f"v_pk_mul_f32 {vr(u,2)}, {vr(u,2)}, {vr(VF,2)}")
            if t & 1:
                d = 3 - (t >> 1)
                a(f"v_cvt_pk_bf16_f32 v{O+d}, v{u}, v{u-2}\nv_cvt_pk_bf16_f32 v{O+4+d}, v{u+1}, v{u-1}")
        sc = "sc1" if self.mode == "fused" else ""
        a(f"global_store_dwordx4 v6, {vr(O,4)}, {sr(WS,2)} {sc}\nglobal_store_dwordx4 v6, {vr(O+4,4)}, {sr(WS,2)} offset:128 {sc}")
    def a_hprep_setup(self):
        a = self.a
        a(f"s_mul_i32 s55, s{S_WAVE}, {CS}\nv_lshrrev_b32 v10, 2, v1\nv_lshlrev_b32 v10, 8, v10\nv_add3_u32 v10, v10, v9, s55")
        a(f"v_min_u32 v11, {29*16}, v8\nv_add_u32 v11, s55, v11")
        for i in range(16, 32): a(f"v_mov_b32 v{i}, 0")
        a(f"ds_write_b128 v11, v[16:19] offset:{KVL+4096}")
    def a_hprep_pass(self, p):
        a = self.a
        b, c, w0 = 32 + 8 * p, 36 + 8 * p, 64 + p
        T = 72 + 8 * (p & 1)
        a(f"v_alignbit_b32 v{T}, v{b}, v{w0}, 16")
        for i in range(1, 4): a(f"v_alignbit_b32 v{T+i}, v{b+i}, v{b+i-1}, 16")
        for i in range(4): a(f"v_alignbit_b32 v{T+4+i}, v{c+i}, v{b+i}, 16")
        a(f"ds_write_b128 v10, {vr(b,4)} offset:{4096*p+64}\nds_write_b128 v10, {vr(c,4)} offset:{4096*p+192}")
        a(f"ds_write_b128 v10, {vr(T,4)} offset:{4096*p}\nds_write_b128 v10, {vr(T+4,4)} offset:{4096*p+128}")
    def a_hprep_finish(self):
        a = self.a
        a(f"v_add_u32 v11, s55, v9\nds_write_b128 v11, v[68:71] offset:{KVL+4576}")
        a("v_and_b32 v2, 15, v1\nv_lshrrev_b32 v3, 4, v1")
        a("v_lshrrev_b32 v4, 2, v2\nv_lshl_add_u32 v4, v3, 1, v4\nv_add_u32 v5, 1, v4\nv_and_b32 v11, 3, v2\nv_lshlrev_b32 v11, 6, v11\nv_add_u32 v11, s55, v11")
        for r in (4, 5):
            a(f"v_lshrrev_b32 v12, 3, v{r}\nv_and_b32 v{r}, 7, v{r}\nv_lshlrev_b32 v{r}, 3, v{r}\nv_lshl_add_u32 v{r}, v12, 8, v{r}\nv_add_u32 v{r}, v{r}, v11")
        a(f"v_sub_u32 v6, 15, v2\nv_lshlrev_b32 v6, 5, v6\nv_lshl_add_u32 v6, v3, 4, v6\nv_add_u32 v6, s55, v6\nv_add_u32 v6, {KVL}, v6")
        a(f"v_lshl_add_u32 v11, v3, 3, v2\nv_lshlrev_b32 v12, 1, v11\nv_add_u32 v12, s55, v12\ns_waitcnt lgkmcnt(0)\nds_read_b128 v[88:91], v12 offset:{KVL+4576-30}")
        a("s_bitcmp1_b32 s50, 0\ns_cselect_b32 s52, 16, 0\ns_lshr_b32 s53, s53, s52\ns_and_b32 s53, s53, 0xffff")
        a("v_sub_u32 v11, 15, v11\nv_and_b32 v12, 1, v11\nv_lshlrev_b32 v12, 4, v12\nv_lshlrev_b32 v12, v12, s53\nv_ashrrev_i32 v11, 1, v11")
        for i in range(4):
            a(f"v_cmp_eq_u32 vcc, {i}, v11\nv_cndmask_b32 v{92+i}, 0, v12, vcc")
    def a_read_tile(self, dst, n):
        self.a(f"ds_read_b64 {vr(dst,2)}, v4 offset:{(n-1)*256}\nds_read_b64 {vr(dst+2,2)}, v5 offset:{(n-1)*256}")
    def a_resident(self, part):
        a = self.a
        js = (4, 5, 6, 7) if part == 0 else (4, 5)
        for j in js:
            for rho in range(8):
                self.a_read_tile(128 + 32 * (j - 4) + 4 * rho, 8 * j + rho)
        for j in (1, 2, 3): self.a_read_tile(64 + 4 * j, 8 * j)
    def a_kv_load(self, part):
        a = self.a
        n = 4 if part == 0 else 3
        sc = "sc1" if self.mode == "fused" else ""
        for i in range(n):
            a(f"buffer_load_dwordx4 {vr(104+4*i,4)}, v7, {sr(SRD_WS,4)}, s{60+i} offen {sc}")
        a(f"global_load_dwordx4 v[96:99], v14, {sr(Q,2)}\nv_add_u32 v14, {64*1152}, v14\nglobal_load_dwordx4 v[100:103], v14, {sr(Q,2)}")
        for i in range(n):
            a(f"s_waitcnt vmcnt({n-1-i+2})\nds_write_b128 v13, {vr(104+4*i,4)} offset:{3072-1024*i}")
        a("s_waitcnt lgkmcnt(0)\ns_barrier")
    def a_p2_addr(self, part):
        a = self.a
        tiles = self.tiles(part)
        a(f"s_lshr_b32 s48, s{S_J}, 1\ns_lshl_b32 s60, s48, 15\ns_add_u32 s61, s60, 8192\ns_add_u32 s62, s60, 16384\ns_add_u32 s63, s60, 24576\nv_lshlrev_b32 v7, 4, v0")
        a(f"v_and_b32 v11, 3, v0\nv_bfe_u32 v12, v0, 3, 1\nv_lshl_add_u32 v11, v11, 1, v12\nv_mul_u32_u24 v13, {CS}, v11")
        a(f"v_lshrrev_b32 v11, 4, v0\nv_bfe_u32 v12, v0, 2, 1\nv_lshl_add_u32 v11, v11, 1, v12\nv_sub_u32 v11, 63, v11\nv_lshl_add_u32 v13, v11, 4, v13\nv_add_u32 v13, {KVL}, v13")
        a(f"s_lshr_b32 s49, s{S_WAVE}, 1")
        if part == 0:
            a("s_cmp_ge_u32 s49, 2\ns_cselect_b32 s51, 4, 0\ns_add_u32 s51, s51, s49")
        else:
            a("s_add_u32 s51, s49, 2")
        a(f"s_lshl_b32 s51, s51, 1\ns_and_b32 s52, s{S_WAVE}, 1\ns_add_u32 s51, s51, s52\ns_lshl_b32 s51, s51, 7\nv_add_u32 v11, s51, v1")
        a("s_lshl_b32 s48, s48, 4\nv_mul_u32_u24 v14, 1152, v11\nv_add_u32 v14, s48, v14\nv_mul_u32_u24 v15, 2304, v11\nv_add_u32 v15, s48, v15")
        a("v_mul_u32_u24 v8, 192, v3\nv_lshl_add_u32 v8, v2, 3, v8\nv_add_u32 v8, s55, v8")
        a(f"v_bfe_u32 v11, v1, 2, 2\nv_mul_u32_u24 v9, {CS}, v11\nv_and_b32 v11, 3, v1\nv_mul_u32_u24 v11, 192, v11\nv_lshl_add_u32 v11, v3, 3, v11")
        a(f"s_mul_i32 s49, s49, 768\ns_lshl_b32 s52, s52, 6\ns_add_u32 s49, s49, s52\nv_add3_u32 v9, v9, v11, s49\nv_add_u32 v10, {4*CS}, v9")
    def tiles(self, part): return [0, 1, 6, 7] if part == 0 else [2, 3, 4, 5]
    def a_conv(self, part):
        a = self.a
        tiles = self.tiles(part)
        acc = {t: 16 + 4 * i for i, t in enumerate(tiles)}
        if part == 0:
            order = [(4,2),(5,2),(5,1),(6,1),(6,0),(7,0),(0,1),(0,0),(1,0),(0,7),(0,6),(1,6),(1,5),(2,5),(2,4),(3,4),(3,3),(4,3)]
        else:
            order = [(0,5),(0,4),(0,3),(0,2),(1,4),(1,3),(1,2),(1,1),(2,3),(2,2),(2,1),(2,0),(3,2),(3,1),(3,0),(4,1),(4,0),(5,0)]
        assert all((j + m) in acc for j, m in order) and len(set(order)) == 18
        issued = 0
        done = 0
        ready = {}
        def rdB(m, rho):
            nonlocal issued
            a(f"ds_read_b128 {vr(32+4*m,4)}, v6 offset:{3552-512*m+32*(2*rho+1)}")
            issued += 1; ready[("B", m)] = issued
        def rdA(j, rho):
            nonlocal issued
            self.a_read_tile(64 + 4 * j, 8 * j + rho)
            issued += 2; ready[("A", j)] = issued
        def wait(*ops):
            nonlocal done
            n = max(ready.get(o, 0) for o in ops)
            if n > done:
                a(f"s_waitcnt lgkmcnt({min(issued-n,15)})")
                done = max(n, issued - 15) if issued - n > 15 else n
        seen = []
        for j, m in order:
            if m not in seen: seen.append(m); rdB(m, 0)
        for rho in range(8):
            lastA = {j: i for i, (j, m) in enumerate(order)}
            lastB = {m: i for i, (j, m) in enumerate(order)}
            for i, (j, m) in enumerate(order):
                if j >= 4: ra = 128 + 32 * (j - 4) + 4 * rho; wait(("B", m))
                elif j == 0 and rho == 0: ra = 88; wait(("B", m))
                else: ra = 64 + 4 * j; wait(("A", j), ("B", m))
                c = acc[j + m]
                a(f"v_mfma_f32_16x16x32_bf16 {vr(c,4)}, {vr(ra,4)}, {vr(32+4*m,4)}, {vr(c,4)}")
                if j == 0 and rho == 0:
                    a(f"v_mfma_f32_16x16x32_bf16 {vr(c,4)}, v[92:95], {vr(32+4*m,4)}, {vr(c,4)}")
                if rho < 7:
                    if lastB[m] == i: rdB(m, rho + 1)
                    if lastA[j] == i and j < 4: rdA(j, rho + 1)
    def a_epilogue(self):
        a = self.a
        for i in range(4):
            c = 16 + 4 * i
            a(f"v_cvt_pk_bf16_f32 v{32+2*i}, v{c}, v{c+1}\nv_cvt_pk_bf16_f32 v{33+2*i}, v{c+2}, v{c+3}\nds_write_b64 v8, {vr(32+2*i,2)} offset:{768*i}")
        a("s_waitcnt lgkmcnt(0)\ns_barrier")
        for jj in range(2):
            a(f"ds_read_b64_tr_b16 {vr(40+4*jj,2)}, v9 offset:{32*jj}\nds_read_b64_tr_b16 {vr(42+4*jj,2)}, v10 offset:{32*jj}")
        a("s_waitcnt vmcnt(0)")
        for jj in range(2):
            for i in range(4):
                a(f"v_lshlrev_b32 v{48+8*jj+2*i}, 16, v{96+4*jj+i}\nv_and_b32 v{49+8*jj+2*i}, 0xffff0000, v{96+4*jj+i}")
        for jj in range(2):
            a(f"s_waitcnt lgkmcnt({2-2*jj})")
            for i in range(4):
                z = 40 + 4 * jj + i; t = 64 + 2 * i
                a(f"v_lshlrev_b32 v{t}, 16, v{z}\nv_and_b32 v{t+1}, 0xffff0000, v{z}\nv_pk_mul_f32 {vr(t,2)}, {vr(t,2)}, {vr(48+8*jj+2*i,2)}\nv_cvt_pk_bf16_f32 v{72+4*jj+i}, v{t}, v{t+1}")
            a(f"global_store_dwordx4 v15, {vr(72+4*jj,4)}, {sr(OUT,2)}")
            if jj == 0: a(f"v_add_u32 v15, {64*2304}, v15")

    def trig_setup(self, sX, mul, mask, special, scale):
        a = self.a
        a(f"s_lshl_b32 s49, s{sX}, 3\nv_lshrrev_b32 v20, 1, v2\nv_add_u32 v20, s49, v20\nv_and_b32 v21, 1, v2\nv_cvt_f32_u32 v21, v21\nv_mul_f32 v21, {f32(-0.25)}, v21")
        a(f"v_lshl_add_u32 v22, s{sX}, 4, v2")
        if mul != 1: a(f"v_mul_u32_u24 v20, {mul}, v20\nv_and_b32 v20, {mask}, v20")
        a(f"v_cmp_eq_u32 vcc, 1, v22\nv_cndmask_b32 v20, v20, {special}, vcc\nv_cndmask_b32 v21, v21, 0, vcc".replace(f"v_cndmask_b32 v20, v20, {special}, vcc", f"v_cndmask_b32_e64 v20, v20, {special}, vcc").replace("v_cndmask_b32 v21, v21, 0, vcc", "v_cndmask_b32_e64 v21, v21, 0, vcc"))
        a(f"v_cvt_f32_u32 v20, v20\nv_mul_f32 v20, {f32(scale)}, v20")
    def b_p1(self):
        a = self.a
        nt = self.opt.get("x_nt", "nt")
        a(f"v_lshrrev_b32 v4, 4, v0\nv_and_b32 v5, 15, v0\nv_lshlrev_b32 v6, 6, v4\nv_add_u32 v6, s{S_J}, v6\nv_mul_u32_u24 v6, 1152, v6\nv_lshl_add_u32 v6, v5, 3, v6")
        self.ptr_wait()
        for p in range(9):
            a(f"global_load_dwordx2 {vr(32+2*p,2)}, v6, {sr(X,2)} offset:{128*p} {nt}")
        WA = 200
        a("v_lshrrev_b32 v7, 1, v5\nv_and_b32 v8, 15, v4\nv_xor_b32 v8, v8, v7\nv_lshlrev_b32 v8, 4, v8\nv_lshl_add_u32 v8, v7, 8, v8\nv_and_b32 v7, 1, v5\nv_lshl_add_u32 v8, v7, 3, v8\nv_lshrrev_b32 v7, 4, v4\nv_lshl_add_u32 v8, v7, 11, v8")
        a("v_lshlrev_b32 v7, 2, v5\nv_mul_u32_u24 v9, 57, v7\nv_lshrrev_b32 v9, 9, v9\nv_mul_u32_u24 v9, 9, v9\nv_sub_u32 v7, v7, v9")
        for s in range(9):
            a(f"v_add_u32 v9, {s}, v7\nv_subrev_u32 v10, 9, v9\nv_min_u32 v9, v9, v10\nv_lshl_add_u32 v{WA+s}, v9, 12, v8")
        a("v_and_b32 v2, 15, v1\nv_lshrrev_b32 v3, 4, v1")
        a(f"s_lshr_b32 s50, s{S_WAVE}, 1\ns_and_b32 s51, s{S_WAVE}, 1")
        self.trig_setup(50, 57, 63, 32, 1.0 / 64)
        a("v_lshlrev_b32 v22, 3, v3\nv_cvt_f32_u32 v22, v22\nv_fma_f32 v21, v20, v22, v21")
        a(f"v_mul_f32 v23, {f32(24.0)}, v20")
        for kk in range(2):
            for i in range(4):
                a(f"v_cos_f32 v24, v21\nv_add_f32 v21, v21, v20\nv_cos_f32 v25, v21\nv_add_f32 v21, v21, v20\nv_cvt_pk_bf16_f32 v{68+4*kk+i}, v24, v25")
            if kk == 0: a("v_add_f32 v21, v21, v23")
        self.trig_setup(51, 1, 0, 16, 1.0 / 32)
        a("v_lshlrev_b32 v22, 2, v3\nv_cvt_f32_u32 v22, v22\nv_fma_f32 v21, v20, v22, v21")
        a(f"v_mul_f32 v23, {f32(12.0)}, v20")
        for i in range(4):
            a(f"v_cos_f32 v24, v21\nv_add_f32 v21, v21, v20\nv_cos_f32 v25, v21\nv_add_f32 v21, v21, v20\nv_cvt_pk_bf16_f32 v{76+i}, v24, v25")
            if i == 1: a("v_add_f32 v21, v21, v23")
        a("s_lshl_b32 s49, s51, 11\nv_xor_b32 v10, v2, v3\nv_lshlrev_b32 v10, 4, v10\nv_lshl_add_u32 v10, v3, 8, v10\nv_add_u32 v10, s49, v10\nv_xor_b32 v11, 64, v10\nv_add_u32 v11, 1024, v11")
        a(f"v_lshl_add_u32 v12, s51, 4, v2\nv_mul_u32_u24 v12, 1288, v12\nv_add_u32 v12, {L2}, v12")
        a("s_lshr_b32 s49, s50, 1\ns_mul_i32 s49, s49, 320\ns_and_b32 s52, s50, 1\ns_lshl_b32 s52, s52, 3\ns_add_u32 s49, s49, s52")
        a("v_lshrrev_b32 v13, 1, v3\nv_mul_u32_u24 v13, 640, v13\nv_and_b32 v14, 1, v3\nv_lshl_add_u32 v13, v14, 2, v13\nv_add3_u32 v13, v13, v12, s49")
        a("s_lshl_b32 s49, s50, 3\ns_sub_u32 s49, 36, s49\nv_lshlrev_b32 v14, 1, v3\nv_sub_u32 v14, s49, v14\nv_mul_u32_u24 v9, 57, v14\nv_lshrrev_b32 v9, 9, v9\nv_mul_u32_u24 v9, 9, v9\nv_sub_u32 v14, v14, v9")
        for e in range(9):
            a(f"v_add_u32 v9, {e}, v14\nv_subrev_u32 v15, 9, v9\nv_min_u32 v9, v9, v15\nv_lshl_add_u32 v{116+e}, v9, 5, v13")
        a(f"v_lshrrev_b32 v14, 2, v1\nv_mul_u32_u24 v14, 1288, v14\nv_and_b32 v9, 3, v1\nv_mul_u32_u24 v15, 320, v9\ns_lshl_b32 s49, s50, 4\ns_add_u32 s49, s49, {L2}\nv_add3_u32 v14, v14, v15, s49")
        a(f"v_lshrrev_b32 v15, 2, v2\nv_lshl_add_u32 v15, s51, 2, v15\nv_mul_u32_u24 v15, {19*16384}, v15\nv_lshl_add_u32 v15, v3, 6, v15\nv_lshl_add_u32 v15, v9, 4, v15")
        a(f"s_lshl_b32 s49, s50, 14\ns_lshl_b32 s52, s{S_J}, 8\ns_add_u32 s49, s49, s52\ns_add_u32 s49, s49, {VOFF}\nv_add_u32 v15, s49, v15")
        c = lambda k: math.cos(2 * math.pi * k / 9); s_ = lambda k: math.sin(2 * math.pi * k / 9)
        CN = {"c1": c(1), "c2": c(2), "c4": c(4), "s1": s_(1), "s2": s_(2), "s3": s_(3), "s4": s_(4), "mh": -0.5}
        CR = {}
        for i, (k, v) in enumerate(CN.items()):
            CR[k] = sr(60 + 2 * i, 2)
            a(f"s_mov_b32 s{60+2*i}, {f32(v)}\ns_mov_b32 s{61+2*i}, {f32(v)}")
        a("v_mov_b32 v9, 0xffff")
        a("s_waitcnt vmcnt(0)")
        self.stamp(1)
        for s in range(9):
            a(f"v_bfi_b32 v{50+2*s}, v9, v{32+2*s}, v{32+2*((s-1)%9)}\nv_bfi_b32 v{51+2*s}, v9, v{33+2*((s-2)%9)}, v{33+2*((s-3)%9)}")
            a(f"ds_write_b64 v{WA+s}, {vr(50+2*s,2)}")
        a("s_waitcnt lgkmcnt(0)\ns_barrier")
        order = [1, 8, 2, 7, 4, 5, 3, 6, 0]
        for i, b in enumerate(order):
            a(f"ds_read_b128 {vr(128+8*i,4)}, v10 offset:{4096*b}\nds_read_b128 {vr(132+8*i,4)}, v11 offset:{4096*b}")
        for i, b in enumerate(order):
            a(f"s_waitcnt lgkmcnt({min(15, 17-2*i)})")
            a(f"v_mfma_f32_16x16x32_bf16 {vr(80+4*b,4)}, v[68:71], {vr(128+8*i,4)}, 0")
            a(f"s_waitcnt lgkmcnt({min(15, 16-2*i)})")
            a(f"v_mfma_f32_16x16x32_bf16 {vr(80+4*b,4)}, v[72:75], {vr(132+8*i,4)}, {vr(80+4*b,4)}")
        self.stamp(2)
        def P(r): return vr(r, 2)
        add = lambda d, x, y: a(f"v_pk_add_f32 {P(d)}, {P(x)}, {P(y)}")
        sub = lambda d, x, y: a(f"v_pk_add_f32 {P(d)}, {P(x)}, {P(y)} neg_lo:[0,1] neg_hi:[0,1]")
        def fma(d, x, k, y, nk=False, ny=False):
            m = ""
            if nk or ny: m = f" neg_lo:[0,{int(nk)},{int(ny)}] neg_hi:[0,{int(nk)},{int(ny)}]"
            a(f"v_pk_fma_f32 {P(d)}, {P(x)}, {CR[k]}, {P(y)}{m}")
        ZR = [[0] * 9, [0] * 9]
        gens = []
        for h in range(2):
            g = lambda b, h=h: 80 + 4 * b + 2 * h
            T = 128 + 44 * h
            a1, a2, a3, a4, b1, b2, b3, b4, t, u, w, p, q, C0, C1, C2, C3, C4, S1, S2, S3, S4 = [T + 2 * i for i in range(22)]
            gens.append((g, (a1, a2, a3, a4, b1, b2, b3, b4, t, u, w, p, q, C0, C1, C2, C3, C4, S1, S2, S3, S4)))
        def both(fn):
            for h in range(2): fn(gens[h][0], *gens[h][1])
        both(lambda g, a1, a2, a3, a4, b1, b2, b3, b4, *r: (add(a1, g(1), g(8)), sub(b1, g(1), g(8))))
        both(lambda g, a1, a2, a3, a4, b1, b2, b3, b4, *r: (add(a2, g(2), g(7)), sub(b2, g(2), g(7))))
        both(lambda g, a1, a2, a3, a4, b1, b2, b3, b4, *r: (add(a4, g(4), g(5)), sub(b4, g(4), g(5))))
        both(lambda g, a1, a2, a3, a4, b1, b2, b3, b4, *r: (add(a3, g(3), g(6)), sub(b3, g(3), g(6))))
        def body(g, a1, a2, a3, a4, b1, b2, b3, b4, t, u, w, p, q, C0, C1, C2, C3, C4, S1, S2, S3, S4):
            add(t, a1, a2); sub(p, a1, a4); sub(q, a2, a4); add(t, t, a4); add(u, g(0), a3); fma(w, a3, "mh", g(0))
            add(C0, u, t); fma(C3, t, "mh", u)
            fma(C1, p, "c1", w); fma(C2, p, "c2", w); fma(C4, p, "c4", w)
            fma(C1, q, "c2", C1); fma(C2, q, "c4", C2); fma(C4, q, "c1", C4)
            sub(S3, b1, b2); add(p, b1, b2); add(q, b2, b4); a(f"v_pk_mul_f32 {P(b3)}, {P(b3)}, {CR['s3']}"); add(S3, S3, b4)
            fma(S1, p, "s1", b3); fma(S2, p, "s2", b3, ny=True); fma(S4, p, "s4", b3)
            a(f"v_pk_mul_f32 {P(S3)}, {P(S3)}, {CR['s3']}")
            fma(S1, q, "s4", S1); fma(S2, q, "s1", S2, nk=True); fma(S4, q, "s2", S4, nk=True)
        both(body)
        Ls = self.lab("Lsp")
        r0 = gens[0][1]; Cs = r0[13:18]; Ss = [None] + list(r0[18:22])
        a(f"s_cmp_lg_u32 s50, 0\ns_cbranch_scc1 {Ls}\ns_mov_b64 exec, 0xffff")
        for e in range(9):
            k = e if e <= 4 else 9 - e
            src = "0" if e == 0 else (f"v{Ss[k]+1}" if e <= 4 else f"-v{Ss[k]+1}")
            m = (e + 4) % 9
            off = (m >> 2) * 320 + (36 + ((m >> 1) & 1)) * 8 + (m & 1) * 4
            a(f"v_cvt_pk_bf16_f32 v{16+e}, v{Cs[k]+1}, {src}\nds_write_b32 v12, v{16+e} offset:{off}")
        for k in range(5): a(f"v_mov_b32 v{Cs[k]+1}, 0")
        for k in range(1, 5): a(f"v_mov_b32 v{Ss[k]+1}, 0")
        a(f"s_mov_b64 exec, -1\n{Ls}:")
        for h in range(2):
            r = gens[h][1]; C = r[13:18]; S = [None] + list(r[18:22])
            ZR[h][0] = C[0]
            for k in range(1, 5):
                ZR[h][k] = 80 + 4 * k + 2 * h; ZR[h][9 - k] = 80 + 4 * (9 - k) + 2 * h
        def combo(h, e):
            if e == 0: return
            r = gens[h][1]; C = r[13:18]; S = [None] + list(r[18:22])
            k = e if e <= 4 else 9 - e
            ng = "neg_lo:[0,1]" if e <= 4 else "neg_hi:[0,1]"
            a(f"v_pk_add_f32 {P(ZR[h][e])}, {P(C[k])}, {P(S[k])} op_sel:[0,1] op_sel_hi:[1,0] {ng}")
        for e in range(9):
            combo(0, e); combo(1, (e + 1) % 9)
            z0, z1 = ZR[0][e], ZR[1][(e + 1) % 9]
            a(f"v_cvt_pk_bf16_f32 v{32+2*e}, v{z0}, v{z1}\nv_cvt_pk_bf16_f32 v{33+2*e}, v{z0+1}, v{z1+1}")
            a(f"ds_write2_b32 v{116+e}, v{32+2*e}, v{33+2*e} offset0:0 offset1:4")
        a("s_waitcnt lgkmcnt(0)\ns_barrier")
        self.stamp(3)
        for r in range(5):
            for T in range(2):
                for h2 in range(2):
                    a(f"ds_read_b64_tr_b16 {vr(128+8*r+4*T+2*h2,2)}, v14 offset:{64*r+8*T+20608*h2}")
        sc = "sc1" if self.mode == "fused" else ""
        Le = self.lab("Lse")
        for r in range(5):
            a(f"s_waitcnt lgkmcnt({min(15, 18-4*r)})")
            a(f"v_mfma_f32_16x16x32_bf16 {vr(176+8*r,4)}, {vr(128+8*r,4)}, v[76:79], 0")
            a(f"s_waitcnt lgkmcnt({min(15, 16-4*r)})")
            a(f"v_mfma_f32_16x16x32_bf16 {vr(180+8*r,4)}, {vr(132+8*r,4)}, v[76:79], 0")
        for r in range(5):
            if r == 4: a(f"s_cmp_eq_u32 s50, 3\ns_cbranch_scc1 {Le}")
            for i in range(4): a(f"v_cvt_pk_bf16_f32 v{32+4*r+i}, v{176+8*r+2*i}, v{177+8*r+2*i}")
            a(f"global_store_dwordx4 v15, {vr(32+4*r,4)}, {sr(WS,2)} {sc}")
            if r < 4: a("v_add_u32 v15, 0x10000, v15")
        a(f"{Le}:")
    def b_p2_setup(self):
        a = self.a
        a("v_and_b32 v2, 15, v1\nv_lshrrev_b32 v3, 4, v1")
        a(f"s_mul_i32 s50, s{S_J}, 57\ns_lshr_b32 s50, s50, 9\ns_mul_i32 s51, s50, 9\ns_sub_u32 s51, s{S_J}, s51")
        a(f"s_lshr_b32 s52, s{S_WAVE}, 2\ns_lshl_b32 s53, s50, 1\ns_add_u32 s53, s53, s52")
        a("s_and_b32 s54, s53, 15\ns_cmp_eq_u32 s54, 0\ns_cselect_b32 s54, 0, -1")
        a(f"s_and_b32 s49, s{S_WAVE}, 3\ns_lshl_b32 s49, s49, 9\ns_add_u32 s55, s49, s53")
        a(f"v_lshl_add_u32 v20, v2, 5, s55\nv_cvt_f32_u32 v20, v20\nv_mul_f32 v20, {f32(1.0/2048)}, v20\nv_lshlrev_b32 v22, 3, v3\nv_cvt_f32_u32 v22, v22\nv_mul_f32 v21, v20, v22\nv_mul_f32 v23, {f32(24.0)}, v20")
        for kk in range(2):
            for i in range(4):
                d = 4 * kk + i
                a(f"v_cos_f32 v24, v21\nv_sin_f32 v26, v21\nv_add_f32 v21, v21, v20\nv_cos_f32 v25, v21\nv_sin_f32 v27, v21\nv_add_f32 v21, v21, v20")
                a(f"v_cvt_pk_bf16_f32 v{64+d}, v24, v25\nv_cvt_pk_bf16_f32 v{80+d}, v26, v27\nv_cvt_pk_bf16_f32 v{72+d}, -v26, -v27")
                a(f"v_and_b32 v{88+d}, s54, v{64+d}\nv_and_b32 v{72+d}, s54, v{72+d}")
            if kk == 0: a("v_add_f32 v21, v21, v23")
        a(f"s_and_b32 s49, s50, 7\ns_mul_i32 s49, s49, 19\ns_lshl_b32 s60, s51, 1\ns_add_u32 s60, s60, s49\ns_lshl_b32 s60, s60, 14\ns_add_u32 s60, s60, {VOFF}")
        a("s_add_u32 s61, s60, 8192\ns_add_u32 s62, s60, 16384\ns_add_u32 s63, s60, 24576")
        a(f"s_add_u32 s49, s49, 18\ns_lshl_b32 s64, s49, 14\ns_add_u32 s64, s64, {VOFF}\ns_lshr_b32 s49, s51, 2\ns_lshl_b32 s49, s49, 6\ns_add_u32 s64, s64, s49\ns_and_b32 s49, s51, 3\ns_lshl_b32 s49, s49, 2\ns_add_u32 s64, s64, s49")
        a("v_lshlrev_b32 v4, 4, v0")
        a("v_bfe_u32 v9, v0, 2, 6\nv_and_b32 v10, 3, v0\nv_lshlrev_b32 v5, 8, v9\nv_lshl_add_u32 v5, v10, 4, v5")
        def rho(dst, src, tmp):
            a(f"v_and_b32 v{dst}, 35, v{src}\nv_bfe_u32 v{tmp}, v{src}, 2, 1\nv_lshl_add_u32 v{dst}, v{tmp}, 4, v{dst}\nv_bfe_u32 v{tmp}, v{src}, 3, 2\nv_lshl_add_u32 v{dst}, v{tmp}, 2, v{dst}")
        rho(7, 9, 11)
        a(f"v_mul_u32_u24 v7, 544, v7\nv_lshl_add_u32 v7, v10, 3, v7\nv_add_u32 v7, {L3+512}, v7")
        a("v_lshrrev_b32 v9, 4, v0")
        rho(6, 9, 11)
        a(f"v_mul_u32_u24 v6, 544, v6\nv_lshl_add_u32 v6, v10, 5, v6\nv_bfe_u32 v11, v0, 3, 1\nv_lshl_add_u32 v6, v11, 7, v6\nv_bfe_u32 v11, v0, 2, 1\nv_lshl_add_u32 v6, v11, 4, v6\nv_add_u32 v6, {L3}, v6")
        a("s_lshl_b32 s49, s52, 1\ns_cmp_eq_u32 s53, 16\ns_cselect_b32 s49, 1, s49\ns_lshl_b32 s65, s49, 5\ns_lshl_b32 s49, s49, 3")
        a(f"v_lshrrev_b32 v9, 2, v1\nv_mul_u32_u24 v9, 544, v9\nv_add_u32 v9, {L3}, v9\nv_and_b32 v10, 3, v1\nv_lshl_add_u32 v8, v10, 3, v9\nv_add_u32 v8, s65, v8")
        a("v_add_u32 v9, s49, v9\nv_cmp_eq_u32 vcc, 3, v10")
        for comp in range(2):
            for cs in range(2):
                a(f"v_add_u32 v11, {8+256*comp+32*cs}, v8\nv_add_u32 v28, {512+8*cs}, v9\nv_cndmask_b32 v{16+2*comp+cs}, v11, v28, vcc")
        a(f"s_lshl_b32 s49, s{S_WAVE}, 12\nv_lshrrev_b32 v11, 1, v2\nv_add_u32 v11, v11, v3\nv_and_b32 v11, 3, v11\nv_lshlrev_b32 v11, 4, v11\nv_lshl_add_u32 v20, v2, 6, v11\nv_add_u32 v20, s49, v20")
        a("v_lshrrev_b32 v9, 2, v1\nv_lshrrev_b32 v11, 3, v1\nv_add_u32 v21, v11, v10\nv_and_b32 v21, 3, v21\nv_sub_u32 v22, v11, v10\nv_add_u32 v22, 3, v22\nv_and_b32 v22, 3, v22")
        a("v_lshlrev_b32 v11, 6, v9\nv_add_u32 v11, s49, v11\nv_lshl_add_u32 v21, v21, 4, v11\nv_lshl_add_u32 v22, v22, 4, v11")
        a(f"v_lshl_add_u32 v9, v9, 5, s55\nv_sub_u32 v11, 2048, v9\nv_and_b32 v11, 2047, v11\nv_lshlrev_b32 v10, 4, v10\nv_add_u32 v10, 1152, v10\nv_mad_u32_u24 v23, v9, s68, v10\nv_mad_u32_u24 v24, v11, s68, v10".replace("v_lshl_add_u32 v9, v9, 5, s55", "s_movk_i32 s68, 2304\nv_lshl_add_u32 v9, v9, 5, s55"))
        a("s_lshl_b32 s66, s51, 7\ns_sub_u32 s67, 1088, s66\nv_add_u32 v25, s67, v23\nv_add_u32 v26, s67, v24\nv_add_u32 v23, s66, v23\nv_add_u32 v24, s66, v24")
    def b_p2(self, endlab):
        a = self.a
        sc = "sc1" if self.mode == "fused" else ""
        for i in range(4):
            a(f"buffer_load_dwordx4 {vr(96+4*i,4)}, v4, {sr(SRD_WS,4)}, s{60+i} offen {sc}")
        a(f"buffer_load_dword v112, v5, {sr(SRD_WS,4)}, s64 offen {sc}")
        for i in range(4):
            a(f"s_waitcnt vmcnt({4-i})\nds_write_b128 v6, {vr(96+4*i,4)} offset:{(i&1)*17408+(i>>1)*256}")
        a("s_waitcnt vmcnt(0)\nds_write_b32 v7, v112\ns_waitcnt lgkmcnt(0)\ns_barrier")
        self.stamp(5)
        a(f"s_cmp_eq_u32 s53, 17\ns_cbranch_scc1 {endlab}")
        M = {(0, 0): 64, (0, 1): 72, (1, 0): 80, (1, 1): 88}
        ACC = {(0, 0): 32, (0, 1): 36, (0, 2): 40, (1, 0): 44, (1, 1): 48, (1, 2): 52}
        jobs = [(comp, cs, kk, T) for kk in range(2) for cs in range(2) for comp in range(2) for T in range(3)]
        D = 7
        def rd(i):
            comp, cs, kk, T = jobs[i]
            for h in range(2):
                if T < 2: a(f"ds_read_b64_tr_b16 {vr(128+4*i+2*h,2)}, v8 offset:{kk*17408+h*8704+comp*256+T*128+cs*32}")
                else: a(f"ds_read_b64_tr_b16 {vr(128+4*i+2*h,2)}, v{16+2*comp+cs} offset:{kk*17408+h*8704}")
        for i in range(D): rd(i)
        first = set()
        for i, (comp, cs, kk, T) in enumerate(jobs):
            rem = min(len(jobs), i + D) - i - 1
            a(f"s_waitcnt lgkmcnt({2*rem})")
            c = ACC[(comp, T)]
            src = vr(c, 4) if (comp, T) in first else "0"
            first.add((comp, T))
            a(f"v_mfma_f32_16x16x32_bf16 {vr(c,4)}, {vr(128+4*i,4)}, {vr(M[(comp,cs)]+4*kk,4)}, {src}")
            if i + D < len(jobs): rd(i + D)
        a("v_cmp_eq_u32 vcc, 3, v3\nv_cndmask_b32 v52, v52, v53, vcc")
        for i in range(0, 8, 2):
            a(f"v_pk_add_f32 {vr(96+i,2)}, {vr(32+i,2)}, {vr(44+i,2)} neg_lo:[0,1] neg_hi:[0,1]\nv_pk_add_f32 {vr(106+i,2)}, {vr(32+i,2)}, {vr(44+i,2)}")
        a("v_sub_f32 v104, v40, v52\nv_add_f32 v114, v40, v52")
        Dm, Dp = 96, 106
        for x, (b, rev) in enumerate(((Dm, 0), (Dp, 1), (Dp, 0), (Dm, 1))):
            for i in range(4):
                if rev: a(f"v_cvt_pk_bf16_f32 v{128+4*x+i}, v{b+8-2*i}, v{b+7-2*i}")
                else: a(f"v_cvt_pk_bf16_f32 v{128+4*x+i}, v{b+2*i}, v{b+2*i+1}")
            a(f"ds_write_b128 v20, {vr(128+4*x,4)} offset:{L4+1024*x}")
        a("s_waitcnt lgkmcnt(0)")
        for x in range(4):
            a(f"ds_read_b128 {vr(144+4*x,4)}, v{21+(x&1)} offset:{L4+1024*x}")
        so = self.opt.get("b_out", "")
        ad = (23, 25, 24, 26)
        for x in range(4):
            if x == 2: a(f"s_cmp_eq_u32 s54, 0\ns_cbranch_scc1 {endlab}")
            a(f"s_waitcnt lgkmcnt({3-x})\nglobal_store_dwordx4 v{ad[x]}, {vr(144+4*x,4)}, {sr(OUT,2)} {so}")

    def dispatch(self, LA, LB1, LB2):
        a = self.a
        a(f"s_add_u32 s{S_J}, s48, 64\ns_cmp_eq_u32 s3, 0\ns_cbranch_scc1 {LB2}")
        a(f"s_sub_u32 s{S_J}, s2, 144\ns_cmp_ge_u32 s3, 27\ns_cbranch_scc1 {LB2}")
        a(f"s_sub_u32 s{S_J}, s2, 152\ns_cmp_ge_u32 s3, 19\ns_cbranch_scc1 {LB1}")
        a(f"s_mul_i32 s{S_J}, s48, 18\ns_add_u32 s{S_J}, s{S_J}, s3\ns_sub_u32 s{S_J}, s{S_J}, 1")
    def kd(self, kname):
        self.a(f""".section .rodata,"a"
.p2align 6
.amdhsa_kernel {kname}
.amdhsa_next_free_vgpr 256
.amdhsa_next_free_sgpr 102
.amdhsa_accum_offset 256
.amdhsa_group_segment_fixed_size 0
.amdhsa_kernarg_size 112
.amdhsa_user_sgpr_count 2
.amdhsa_user_sgpr_kernarg_segment_ptr 1
.amdhsa_system_sgpr_workgroup_id_x 1
.amdhsa_float_denorm_mode_32 3
.end_amdhsa_kernel
.text""")
    def a_p2_all(self, fin, fused):
        a = self.a
        LQ = self.lab("LAq"); LE = self.lab("LAe")
        self.a_hprep_finish()
        a(f"s_bitcmp1_b32 s{S_J}, 0\ns_cbranch_scc1 {LQ}")
        for part in range(2):
            if part: a(f"{LQ}:")
            self.a_resident(part)
            self.a_p2_addr(part)
            a("s_waitcnt lgkmcnt(0)")
            self.stamp(3)
            if fused:
                a(f"v_mov_b32 v120, v13\ns_and_b32 s48, s{S_J}, -16")
                self.poll(48, 16, False)
                a("v_mov_b32 v13, v120")
            else:
                a("s_barrier")
            self.stamp(4)
            self.a_kv_load(part)
            self.stamp(5)
            self.a_conv(part)
            if part == 0: a(f"s_branch {LE}")
        a(f"{LE}:\ns_nop 7")
        self.stamp(6)
        self.a_epilogue()
        a(f"s_branch {fin}")
    def build(self):
        a = self.a
        hdr = open("cdna_kernels/" + NAME + ".s.ref").read().split("\n")
        head = [l for l in hdr if l.startswith(";") and "@launch" not in l and "Override" not in l and "grid=ceil" not in l][:15]
        cb = self.opt.get("codebytes", 16384)
        if self.mode == "two":
            head += [f"; @launch kernel=p1_kernel grid=({NWG},1,1) block=(512,1,1) lds={LDS_BYTES}", f"; @launch kernel=p2_kernel grid=({NWG},1,1) block=(512,1,1) lds={LDS_BYTES}"]
            a('.amdgcn_target "amdgcn-amd-amdhsa--gfx950"\n.text')
            self.prologue("p1_kernel", "L1_end", 4096)
            self.dispatch("x", "L1_b1", "L1_fin")
            self.a_p1_loads(); self.a_p1_compute(0); a("s_branch L1_fin")
            a("L1_b1:"); self.b_p1()
            a("L1_fin:\ns_waitcnt lgkmcnt(0)"); self.dump_stamps(0)
            a("L1_end:\ns_endpgm"); self.kd("p1_kernel")
            self.prologue("p2_kernel", "L2_end", 12288)
            self.dispatch("x", "L2_b2", "L2_b2")
            self.ptr_wait(); self.a_h_loads(); self.a_hprep_setup()
            for p in range(4):
                a(f"s_waitcnt vmcnt({9-3*p})"); self.a_hprep_pass(p)
            self.a_p2_all("L2_fin", False)
            a("L2_b2:"); self.ptr_wait(); self.b_p2_setup(); self.b_p2("L2_fin")
            a("L2_fin:"); self.dump_stamps(1)
            a("L2_end:\ns_endpgm\n.fill 4096, 4, 0xbf800000"); self.kd("p2_kernel")
        else:
            kn = NAME + "_kernel"
            head += [f"; @launch grid=({NWG},1,1) block=(512,1,1) lds={LDS_BYTES}"]
            a('.amdgcn_target "amdgcn-amd-amdhsa--gfx950"\n.text')
            self.prologue(kn, "L_end", cb)
            self.dispatch("x", "L_b1", "L_b2")
            self.a_p1_loads(); nh = self.a_h_loads(); self.a_hprep_setup()
            self.a_p1_compute(nh)
            self.stamp(1)
            npre = self.opt.get("npre", 3)
            for p in range(npre):
                a(f"s_waitcnt vmcnt({9-3*p+2})"); self.a_hprep_pass(p)
            a("s_waitcnt vmcnt(0)")
            self.publish(S_J)
            self.stamp(2)
            for p in range(npre, 4): self.a_hprep_pass(p)
            self.a_p2_all("L_fin", True)
            a("L_b1:"); self.b_p1()
            a(f"s_waitcnt vmcnt(0)\ns_add_u32 s48, s{S_J}, 144")
            self.publish(48)
            a("s_branch L_b2go")
            a("L_b2:"); self.ptr_wait()
            a(f"s_cmp_lg_u32 s2, 0\ns_cbranch_scc1 L_b2w\nv_min_u32 v12, 207, v0\nv_lshlrev_b32 v12, 7, v12\nv_add_u32 v12, {FLAGOFF}, v12\nv_mov_b32 v13, 0")
            a(f"global_store_dword v12, v13, {sr(WS,2)} sc0 sc1\ns_waitcnt vmcnt(0)\ns_barrier\nv_mov_b32 v12, 1\ns_cmp_lg_u32 s{S_WAVE}, 0\ns_cbranch_scc1 L_b2go\ns_mov_b64 exec, 1")
            a(f"global_store_dword v13, v12, {sr(DBG,2)} sc0 sc1\ns_mov_b64 exec, -1\ns_branch L_b2go")
            a(f"L_b2w:\ns_cmp_lg_u32 s{S_WAVE}, 0\ns_cbranch_scc1 L_b2go")
            self.wait_go()
            a("L_b2go:")
            self.b_p2_setup()
            a("s_movk_i32 s48, 144")
            self.poll(48, 64, False)
            self.stamp(4)
            self.b_p2("L_fin")
            a("L_fin:"); self.dump_stamps(0)
            a("L_end:\ns_endpgm\n.fill 1024, 4, 0xbf800000"); self.kd(kn)
        return "\n".join(head) + "\n" + a.text()

if __name__ == "__main__":
    import argparse
    ap = argparse.ArgumentParser()
    ap.add_argument("--mode", default="fused"); ap.add_argument("--stamps", action="store_true"); ap.add_argument("-o", default="/dev/stdout")
    ap.add_argument("--opt", nargs="*", default=[])
    args = ap.parse_args()
    opt = {}
    for o in args.opt:
        k, v = o.split("=", 1)
        opt[k] = int(v) if v.lstrip("-").isdigit() else v
    open(args.o, "w").write(G(args.mode, args.stamps, opt).build())
```

```python
import sys, math, struct
from asmlib import Asm, vr, sr

NAME = "concat_heads__ssm_conv_h3__spectral_fnet__prompt"
NWG = 225
KVOFF = 0
VOFF = 0x240000
FLAGOFF = 0x500000
STAMPOFF = 0x600000
WSBYTES = 268435456
CS = 16944
KVL = 12288
L1, L2, L3, L4 = 0, 36864, 78080, 0
LDS_BYTES = 8 * CS

def f32(x): return "0x%08x" % struct.unpack("<I", struct.pack("<f", x))[0]

S_WAVE, S_J = 6, 7
Q, K, V, SH, H, DD, X, OUT, DBG, WS = 8, 10, 12, 14, 16, 18, 20, 30, 32, 34
SRD_K, SRD_V, SRD_H, SRD_WS = 36, 40, 44, 56

class G:
    def __init__(self, mode="fused", stamps=False, opt=None):
        self.a = Asm(); self.mode = mode; self.stamps = stamps; self.opt = opt or {}
        self.nlab = 0
    def lab(self, p="L"):
        self.nlab += 1; return f"{p}_{self.nlab}"
    def stamp(self, i):
        if self.stamps:
            self.a(f"s_memrealtime s[{80+2*i}:{81+2*i}]\ns_waitcnt lgkmcnt(0)")
    def dump_stamps(self, slot):
        a = self.a
        if not self.stamps: return
        L = self.lab("Lst")
        a("s_waitcnt vmcnt(0)")
        self.stamp(7)
        for i in range(8): a(f"v_mov_b32 v{2+i}, s{80+2*i}")
        a(f"s_lshl_b32 s3, s2, 3\ns_add_u32 s3, s3, s{S_WAVE}\ns_lshl_b32 s3, s3, 5\ns_add_u32 s3, s3, {STAMPOFF + slot*65536}\nv_mov_b32 v10, s3\ns_mov_b64 exec, 1")
        a(f"global_store_dwordx4 v10, v[2:5], {sr(WS,2)}\nglobal_store_dwordx4 v10, v[6:9], {sr(WS,2)} offset:16")
        a(f"{L}:")

    def prologue(self, kname, endlab, codebytes):
        a = self.a
        a(f".globl {kname}\n.p2align 8\n.type {kname},@function\n{kname}:")
        a(f"s_load_dwordx16 s[8:23], s[0:1], 0\ns_load_dwordx8 s[24:31], s[0:1], 64\ns_load_dwordx4 s[32:35], s[0:1], 96")
        if self.stamps:
            for i in range(8): a(f"s_mov_b32 s{80+2*i}, 0")
            a("s_memrealtime s[80:81]")
        a(f"s_cmp_ge_u32 s2, {NWG}\ns_cbranch_scc1 {endlab}")
        if not self.opt.get("nopf"): a(f"s_getpc_b64 s[4:5]\nv_lshlrev_b32 v2, 7, v0\nv_min_u32 v2, {codebytes}, v2\nglobal_load_dword v255, v2, s[4:5]")
        a(f"v_lshrrev_b32 v2, 6, v0\nv_and_b32 v1, 63, v0\nv_readfirstlane_b32 s{S_WAVE}, v2")
        a(f"s_mov_b32 s{SRD_K+2}, 2359296\ns_mov_b32 s{SRD_K+3}, 0x20000\ns_mov_b32 s{SRD_V+2}, 2359296\ns_mov_b32 s{SRD_V+3}, 0x20000")
        a(f"s_mov_b32 s{SRD_H+2}, 2359296\ns_mov_b32 s{SRD_H+3}, 0x20000\ns_mov_b32 s{SRD_WS+2}, {WSBYTES}\ns_mov_b32 s{SRD_WS+3}, 0x20000")
        a("s_lshr_b32 s3, s2, 3\ns_and_b32 s48, s2, 7")
    def ptr_wait(self):
        a = self.a
        a("s_waitcnt lgkmcnt(0)")
        a(f"s_mov_b64 {sr(SRD_K,2)}, {sr(K,2)}\ns_mov_b64 {sr(SRD_V,2)}, {sr(V,2)}\ns_mov_b64 {sr(SRD_H,2)}, {sr(H,2)}\ns_mov_b64 {sr(SRD_WS,2)}, {sr(WS,2)}")

    def go_preload(self):
        if self.mode == "fused":
            self.a(f"v_mov_b32 v126, 0\nglobal_load_dword v127, v126, {sr(DBG,2)} sc0 sc1")
    def wait_go(self, pre=False):
        a = self.a; L = self.lab("Lgo"); E = self.lab("Lgox")
        if pre: a(f"v_cmp_eq_u32 vcc, 0, v127\ns_cbranch_vccz {E}")
        a(f"v_mov_b32 v12, 0\ns_mov_b32 s49, 0\n{L}:\nglobal_load_dword v13, v12, {sr(DBG,2)} sc0 sc1\ns_waitcnt vmcnt(0)")
        a(f"v_cmp_eq_u32 vcc, 0, v13\ns_add_u32 s49, s49, 1\ns_cmp_gt_u32 s49, 0x100000\ns_cbranch_scc1 {E}\ns_cbranch_vccnz {L}\n{E}:")
    def publish(self, sflag):
        a = self.a; L = self.lab("Lpub")
        a(f"s_barrier\ns_cmp_lg_u32 s{S_WAVE}, 0\ns_cbranch_scc1 {L}")
        self.wait_go(True)
        a(f"s_lshl_b32 s49, s{sflag}, 7\ns_add_u32 s49, s49, {FLAGOFF}\nv_mov_b32 v12, s49\nv_mov_b32 v13, 1\ns_mov_b64 exec, 1")
        a(f"global_store_dword v12, v13, {sr(WS,2)} sc0 sc1\ns_mov_b64 exec, -1\n{L}:")
    def poll(self, sfirst, nflags, need_go):
        a = self.a; L = self.lab("Lpoll"); E = self.lab("Lpollx")
        a(f"s_cmp_lg_u32 s{S_WAVE}, 0\ns_cbranch_scc1 {E}")
        if need_go: self.wait_go()
        a(f"v_and_b32 v12, {nflags-1}, v1\nv_add_u32 v12, s{sfirst}, v12\nv_lshlrev_b32 v12, 7, v12\nv_add_u32 v12, {FLAGOFF}, v12\ns_mov_b32 s49, 0")
        a(f"{L}:\nglobal_load_dword v13, v12, {sr(WS,2)} sc0 sc1\ns_waitcnt vmcnt(0)")
        a(f"v_cmp_ne_u32 vcc, 1, v13\ns_add_u32 s49, s49, 1\ns_cmp_gt_u32 s49, 0x100000\ns_cbranch_scc1 {E}\ns_cbranch_vccnz {L}\n{E}:\ns_barrier")

    HRAW = 32
    def a_h_loads(self):
        a = self.a
        a(f"s_lshr_b32 s50, s{S_J}, 1\ns_lshl_b32 s50, s50, 3\ns_add_u32 s50, s50, s{S_WAVE}")
        a(f"s_lshl_b32 s51, s50, 12\nv_lshlrev_b32 v8, 4, v1\nv_and_b32 v9, 48, v8")
        a(f"s_and_b32 s52, s50, -2\ns_lshl_b32 s52, s52, 1\ns_load_dword s53, {sr(DD,2)}, s52")
        nt = self.opt.get("h_nt", "")
        a(f"buffer_load_dwordx4 v[68:71], v9, {sr(SRD_H,4)}, s51 offen")
        for p in range(4):
            a(f"buffer_load_dword v{64+p}, v8, {sr(SRD_H,4)}, s51 offen offset:{32+1024*p} {nt}")
            a(f"buffer_load_dwordx4 {vr(32+8*p,4)}, v8, {sr(SRD_H,4)}, s51 offen offset:{36+1024*p} {nt}")
            a(f"buffer_load_dwordx4 {vr(36+8*p,4)}, v8, {sr(SRD_H,4)}, s51 offen offset:{40+1024*p} {nt}")
        return 13
    def a_p1_loads(self):
        a = self.a
        nt = self.opt.get("kv_nt", "nt")
        a(f"s_lshr_b32 s48, s{S_J}, 4\ns_and_b32 s49, s{S_J}, 15\ns_lshl_b32 s50, s49, 3\ns_add_u32 s50, s50, s{S_WAVE}")
        a(f"s_mul_i32 s51, s50, {16*1152}\ns_lshl_b32 s52, s48, 7\ns_add_u32 s51, s51, s52\ns_movk_i32 s54, 4608")
        a("v_lshrrev_b32 v2, 5, v1\nv_and_b32 v7, 31, v1\nv_mul_u32_u24 v4, 9216, v2\nv_lshl_add_u32 v4, v7, 2, v4\nv_add_u32 v4, s51, v4\nv_add_u32 v5, 0xfffff280, v4")
        a("s_lshl_b32 s52, s48, 9\nv_lshlrev_b32 v6, 4, v7\nv_add_u32 v6, s52, v6")
        self.ptr_wait()
        a(f"global_load_dwordx4 v[128:131], v6, {sr(SH,2)}")
        for i in range(3):
            a(f"buffer_load_dword v{132+i}, v5, {sr(SRD_K,4)}, 0 offen offset:{1152*i} {nt}")
        for t in range(8):
            so = "0" if t < 4 else "s54"
            a(f"buffer_load_dword v{135+t}, v4, {sr(SRD_K,4)}, {so} offen offset:{1152*(t&3)} {nt}")
            a(f"buffer_load_dword v{143+t}, v4, {sr(SRD_V,4)}, {so} offen offset:{1152*(t&3)} {nt}")
        a(f"s_lshl_b32 s52, s48, 18\ns_lshl_b32 s50, s50, 8\ns_add_u32 s52, s52, s50\nv_lshrrev_b32 v6, 2, v7\nv_lshlrev_b32 v6, 15, v6")
        a("v_and_b32 v7, 3, v7\nv_lshlrev_b32 v7, 4, v7\nv_lshl_add_u32 v7, v2, 6, v7\nv_add3_u32 v6, v6, v7, s52")
    def a_p1_compute(self, nh):
        a = self.a
        W, KF, VF, U, O = 152, 160, 182, 184, 200
        def unpack(dst, src):
            a(f"v_lshlrev_b32 v{dst}, 16, v{src}\nv_and_b32 v{dst+1}, 0xffff0000, v{src}")
        a(f"s_waitcnt vmcnt({16+nh})")
        a(f"v_lshlrev_b32 v{W}, 16, v128\nv_lshlrev_b32 v{W+1}, 16, v130\nv_and_b32 v{W+2}, 0xffff0000, v128\nv_and_b32 v{W+3}, 0xffff0000, v130")
        a(f"v_lshlrev_b32 v{W+4}, 16, v129\nv_lshlrev_b32 v{W+5}, 16, v131\nv_and_b32 v{W+6}, 0xffff0000, v129\nv_and_b32 v{W+7}, 0xffff0000, v131")
        for i in range(3): unpack(KF + 2 * i, 132 + i)
        for t in range(8):
            u = U + 2 * t
            a(f"v_pk_mul_f32 {vr(u,2)}, {vr(W+6,2)}, {vr(KF+2*t,2)}")
            a(f"v_pk_fma_f32 {vr(u,2)}, {vr(W+4,2)}, {vr(KF+2*t+2,2)}, {vr(u,2)}")
            a(f"v_pk_fma_f32 {vr(u,2)}, {vr(W+2,2)}, {vr(KF+2*t+4,2)}, {vr(u,2)}")
            a(f"s_waitcnt vmcnt({2*(7-t)+nh})")
            unpack(KF + 2 * t + 6, 135 + t)
            unpack(VF, 143 + t)
            a(f"v_pk_fma_f32 {vr(u,2)}, {vr(W,2)}, {vr(KF+2*t+6,2)}, {vr(u,2)}")
            a(f"v_pk_mul_f32 {vr(u,2)}, {vr(u,2)}, {vr(VF,2)}")
            if t & 1:
                d = 3 - (t >> 1)
                a(f"v_cvt_pk_bf16_f32 v{O+d}, v{u}, v{u-2}\nv_cvt_pk_bf16_f32 v{O+4+d}, v{u+1}, v{u-1}")
        sc = "sc1" if self.mode == "fused" else ""
        a(f"global_store_dwordx4 v6, {vr(O,4)}, {sr(WS,2)} {sc}\nglobal_store_dwordx4 v6, {vr(O+4,4)}, {sr(WS,2)} offset:128 {sc}")
        self.go_preload()
    def a_hprep_setup(self):
        a = self.a
        a(f"s_mul_i32 s55, s{S_WAVE}, {CS}\nv_lshrrev_b32 v10, 2, v1\nv_lshlrev_b32 v10, 8, v10\nv_add3_u32 v10, v10, v9, s55")
        a(f"v_min_u32 v11, {29*16}, v8\nv_add_u32 v11, s55, v11")
        for i in range(16, 32): a(f"v_mov_b32 v{i}, 0")
        a(f"ds_write_b128 v11, v[16:19] offset:{KVL+4096}")
    def a_hprep_pass(self, p):
        a = self.a
        b, c, w0 = 32 + 8 * p, 36 + 8 * p, 64 + p
        T = 72 + 8 * (p & 1)
        a(f"v_alignbit_b32 v{T}, v{b}, v{w0}, 16")
        for i in range(1, 4): a(f"v_alignbit_b32 v{T+i}, v{b+i}, v{b+i-1}, 16")
        for i in range(4): a(f"v_alignbit_b32 v{T+4+i}, v{c+i}, v{b+i}, 16")
        a(f"ds_write_b128 v10, {vr(b,4)} offset:{4096*p+64}\nds_write_b128 v10, {vr(c,4)} offset:{4096*p+192}")
        a(f"ds_write_b128 v10, {vr(T,4)} offset:{4096*p}\nds_write_b128 v10, {vr(T+4,4)} offset:{4096*p+128}")
    def a_hprep_finish(self):
        a = self.a
        a(f"v_add_u32 v11, s55, v9\nds_write_b128 v11, v[68:71] offset:{KVL+4576}")
        a("v_and_b32 v2, 15, v1\nv_lshrrev_b32 v3, 4, v1")
        a("v_lshrrev_b32 v4, 2, v2\nv_lshl_add_u32 v4, v3, 1, v4\nv_add_u32 v5, 1, v4\nv_and_b32 v11, 3, v2\nv_lshlrev_b32 v11, 6, v11\nv_add_u32 v11, s55, v11")
        for r in (4, 5):
            a(f"v_lshrrev_b32 v12, 3, v{r}\nv_and_b32 v{r}, 7, v{r}\nv_lshlrev_b32 v{r}, 3, v{r}\nv_lshl_add_u32 v{r}, v12, 8, v{r}\nv_add_u32 v{r}, v{r}, v11")
        a(f"v_sub_u32 v6, 15, v2\nv_lshlrev_b32 v6, 5, v6\nv_lshl_add_u32 v6, v3, 4, v6\nv_add_u32 v6, s55, v6\nv_add_u32 v6, {KVL}, v6")
        a(f"v_lshl_add_u32 v11, v3, 3, v2\nv_lshlrev_b32 v12, 1, v11\nv_add_u32 v12, s55, v12\ns_waitcnt lgkmcnt(0)\nds_read_b128 v[88:91], v12 offset:{KVL+4576-30}")
        a("s_bitcmp1_b32 s50, 0\ns_cselect_b32 s52, 16, 0\ns_lshr_b32 s53, s53, s52\ns_and_b32 s53, s53, 0xffff")
        a("v_sub_u32 v11, 15, v11\nv_and_b32 v12, 1, v11\nv_lshlrev_b32 v12, 4, v12\nv_lshlrev_b32 v12, v12, s53\nv_ashrrev_i32 v11, 1, v11")
        for i in range(4):
            a(f"v_cmp_eq_u32 vcc, {i}, v11\nv_cndmask_b32 v{92+i}, 0, v12, vcc")
    def a_read_tile(self, dst, n):
        self.a(f"ds_read_b64 {vr(dst,2)}, v4 offset:{(n-1)*256}\nds_read_b64 {vr(dst+2,2)}, v5 offset:{(n-1)*256}")
    def a_resident(self, part):
        a = self.a
        js = (4, 5, 6, 7) if part == 0 else (4, 5)
        for j in js:
            for rho in range(8):
                self.a_read_tile(128 + 32 * (j - 4) + 4 * rho, 8 * j + rho)
        for j in (1, 2, 3): self.a_read_tile(64 + 4 * j, 8 * j)
    def a_kv_load(self, part):
        a = self.a
        n = 4 if part == 0 else 3
        sc = "sc1" if self.mode == "fused" else ""
        for i in range(n):
            a(f"buffer_load_dwordx4 {vr(104+4*i,4)}, v7, {sr(SRD_WS,4)}, s{60+i} offen {sc}")
        for i in range(n):
            a(f"s_waitcnt vmcnt({n-1-i})\nds_write_b128 v13, {vr(104+4*i,4)} offset:{3072-1024*i}")
        a("s_waitcnt lgkmcnt(0)\ns_barrier")
        a(f"global_load_dwordx4 v[96:99], v14, {sr(Q,2)}\nv_add_u32 v14, {64*1152}, v14\nglobal_load_dwordx4 v[100:103], v14, {sr(Q,2)}")
    def a_p2_addr(self, part):
        a = self.a
        tiles = self.tiles(part)
        a(f"s_lshr_b32 s48, s{S_J}, 1\ns_lshl_b32 s60, s48, 15\ns_add_u32 s61, s60, 8192\ns_add_u32 s62, s60, 16384\ns_add_u32 s63, s60, 24576\nv_lshlrev_b32 v7, 4, v0")
        a(f"v_and_b32 v11, 3, v0\nv_bfe_u32 v12, v0, 3, 1\nv_lshl_add_u32 v11, v11, 1, v12\nv_mul_u32_u24 v13, {CS}, v11")
        a(f"v_lshrrev_b32 v11, 4, v0\nv_bfe_u32 v12, v0, 2, 1\nv_lshl_add_u32 v11, v11, 1, v12\nv_sub_u32 v11, 63, v11\nv_lshl_add_u32 v13, v11, 4, v13\nv_add_u32 v13, {KVL}, v13")
        a(f"s_lshr_b32 s49, s{S_WAVE}, 1")
        if part == 0:
            a("s_cmp_ge_u32 s49, 2\ns_cselect_b32 s51, 4, 0\ns_add_u32 s51, s51, s49")
        else:
            a("s_add_u32 s51, s49, 2")
        a(f"s_lshl_b32 s51, s51, 1\ns_and_b32 s52, s{S_WAVE}, 1\ns_add_u32 s51, s51, s52\ns_lshl_b32 s51, s51, 7\nv_add_u32 v11, s51, v1")
        a("s_lshl_b32 s48, s48, 4\nv_mul_u32_u24 v14, 1152, v11\nv_add_u32 v14, s48, v14\nv_mul_u32_u24 v15, 2304, v11\nv_add_u32 v15, s48, v15")
        a("v_mul_u32_u24 v8, 192, v3\nv_lshl_add_u32 v8, v2, 3, v8\nv_add_u32 v8, s55, v8")
        a(f"v_bfe_u32 v11, v1, 2, 2\nv_mul_u32_u24 v9, {CS}, v11\nv_and_b32 v11, 3, v1\nv_mul_u32_u24 v11, 192, v11\nv_lshl_add_u32 v11, v3, 3, v11")
        a(f"s_mul_i32 s49, s49, 768\ns_lshl_b32 s52, s52, 6\ns_add_u32 s49, s49, s52\nv_add3_u32 v9, v9, v11, s49\nv_add_u32 v10, {4*CS}, v9")
    def tiles(self, part): return [0, 1, 6, 7] if part == 0 else [2, 3, 4, 5]
    def a_conv(self, part):
        a = self.a
        tiles = self.tiles(part)
        acc = {t: 16 + 4 * i for i, t in enumerate(tiles)}
        if part == 0:
            order = [(4,2),(5,2),(5,1),(6,1),(6,0),(7,0),(0,1),(0,0),(1,0),(0,7),(0,6),(1,6),(1,5),(2,5),(2,4),(3,4),(3,3),(4,3)]
        else:
            order = [(0,5),(0,4),(0,3),(0,2),(1,4),(1,3),(1,2),(1,1),(2,3),(2,2),(2,1),(2,0),(3,2),(3,1),(3,0),(4,1),(4,0),(5,0)]
        assert all((j + m) in acc for j, m in order) and len(set(order)) == 18
        issued = 0
        done = 0
        ready = {}
        def rdB(m, rho):
            nonlocal issued
            a(f"ds_read_b128 {vr(32+4*m,4)}, v6 offset:{3552-512*m+32*(2*rho+1)}")
            issued += 1; ready[("B", m)] = issued
        def rdA(j, rho):
            nonlocal issued
            self.a_read_tile(64 + 4 * j, 8 * j + rho)
            issued += 2; ready[("A", j)] = issued
        def wait(*ops):
            nonlocal done
            n = max(ready.get(o, 0) for o in ops)
            if n > done:
                a(f"s_waitcnt lgkmcnt({min(issued-n,15)})")
                done = max(n, issued - 15) if issued - n > 15 else n
        seen = []
        for j, m in order:
            if m not in seen: seen.append(m); rdB(m, 0)
        for rho in range(8):
            lastA = {j: i for i, (j, m) in enumerate(order)}
            lastB = {m: i for i, (j, m) in enumerate(order)}
            for i, (j, m) in enumerate(order):
                if j >= 4: ra = 128 + 32 * (j - 4) + 4 * rho; wait(("B", m))
                elif j == 0 and rho == 0: ra = 88; wait(("B", m))
                else: ra = 64 + 4 * j; wait(("A", j), ("B", m))
                c = acc[j + m]
                a(f"v_mfma_f32_16x16x32_bf16 {vr(c,4)}, {vr(ra,4)}, {vr(32+4*m,4)}, {vr(c,4)}")
                if j == 0 and rho == 0:
                    a(f"v_mfma_f32_16x16x32_bf16 {vr(c,4)}, v[92:95], {vr(32+4*m,4)}, {vr(c,4)}")
                if rho < 7:
                    if lastB[m] == i: rdB(m, rho + 1)
                    if lastA[j] == i and j < 4: rdA(j, rho + 1)
    def a_epilogue(self):
        a = self.a
        for i in range(4):
            c = 16 + 4 * i
            a(f"v_cvt_pk_bf16_f32 v{32+2*i}, v{c}, v{c+1}\nv_cvt_pk_bf16_f32 v{33+2*i}, v{c+2}, v{c+3}\nds_write_b64 v8, {vr(32+2*i,2)} offset:{768*i}")
        a("s_waitcnt lgkmcnt(0)\ns_barrier")
        for jj in range(2):
            a(f"ds_read_b64_tr_b16 {vr(40+4*jj,2)}, v9 offset:{32*jj}\nds_read_b64_tr_b16 {vr(42+4*jj,2)}, v10 offset:{32*jj}")
        a("s_waitcnt vmcnt(0)")
        for jj in range(2):
            for i in range(4):
                a(f"v_lshlrev_b32 v{48+8*jj+2*i}, 16, v{96+4*jj+i}\nv_and_b32 v{49+8*jj+2*i}, 0xffff0000, v{96+4*jj+i}")
        for jj in range(2):
            a(f"s_waitcnt lgkmcnt({2-2*jj})")
            for i in range(4):
                z = 40 + 4 * jj + i; t = 64 + 2 * i
                a(f"v_lshlrev_b32 v{t}, 16, v{z}\nv_and_b32 v{t+1}, 0xffff0000, v{z}\nv_pk_mul_f32 {vr(t,2)}, {vr(t,2)}, {vr(48+8*jj+2*i,2)}\nv_cvt_pk_bf16_f32 v{72+4*jj+i}, v{t}, v{t+1}")
            a(f"global_store_dwordx4 v15, {vr(72+4*jj,4)}, {sr(OUT,2)} {self.opt.get('a_out','')}")
            if jj == 0: a(f"v_add_u32 v15, {64*2304}, v15")

    def trig_setup(self, sX, mul, mask, special, scale):
        a = self.a
        a(f"s_lshl_b32 s49, s{sX}, 3\nv_lshrrev_b32 v20, 1, v2\nv_add_u32 v20, s49, v20\nv_and_b32 v21, 1, v2\nv_cvt_f32_u32 v21, v21\nv_mul_f32 v21, {f32(-0.25)}, v21")
        a(f"v_lshl_add_u32 v22, s{sX}, 4, v2")
        if mul != 1: a(f"v_mul_u32_u24 v20, {mul}, v20\nv_and_b32 v20, {mask}, v20")
        a(f"v_cmp_eq_u32 vcc, 1, v22\nv_cndmask_b32 v20, v20, {special}, vcc\nv_cndmask_b32 v21, v21, 0, vcc".replace(f"v_cndmask_b32 v20, v20, {special}, vcc", f"v_cndmask_b32_e64 v20, v20, {special}, vcc").replace("v_cndmask_b32 v21, v21, 0, vcc", "v_cndmask_b32_e64 v21, v21, 0, vcc"))
        a(f"v_cvt_f32_u32 v20, v20\nv_mul_f32 v20, {f32(scale)}, v20")
    def b_p1(self):
        a = self.a
        nt = self.opt.get("x_nt", "nt")
        a(f"v_lshrrev_b32 v4, 4, v0\nv_and_b32 v5, 15, v0\nv_lshlrev_b32 v6, 6, v4\nv_add_u32 v6, s{S_J}, v6\nv_mul_u32_u24 v6, 1152, v6\nv_lshl_add_u32 v6, v5, 3, v6")
        self.ptr_wait()
        for p in range(9):
            a(f"global_load_dwordx2 {vr(32+2*p,2)}, v6, {sr(X,2)} offset:{128*p} {nt}")
        WA = 200
        a("v_lshrrev_b32 v7, 1, v5\nv_and_b32 v8, 15, v4\nv_xor_b32 v8, v8, v7\nv_lshlrev_b32 v8, 4, v8\nv_lshl_add_u32 v8, v7, 8, v8\nv_and_b32 v7, 1, v5\nv_lshl_add_u32 v8, v7, 3, v8\nv_lshrrev_b32 v7, 4, v4\nv_lshl_add_u32 v8, v7, 11, v8")
        a("v_lshlrev_b32 v7, 2, v5\nv_mul_u32_u24 v9, 57, v7\nv_lshrrev_b32 v9, 9, v9\nv_mul_u32_u24 v9, 9, v9\nv_sub_u32 v7, v7, v9")
        for s in range(9):
            a(f"v_add_u32 v9, {s}, v7\nv_subrev_u32 v10, 9, v9\nv_min_u32 v9, v9, v10\nv_lshl_add_u32 v{WA+s}, v9, 12, v8")
        a("v_and_b32 v2, 15, v1\nv_lshrrev_b32 v3, 4, v1")
        a(f"s_lshr_b32 s50, s{S_WAVE}, 1\ns_and_b32 s51, s{S_WAVE}, 1")
        self.trig_setup(50, 57, 63, 32, 1.0 / 64)
        a("v_lshlrev_b32 v22, 3, v3\nv_cvt_f32_u32 v22, v22\nv_fma_f32 v21, v20, v22, v21")
        a(f"v_mul_f32 v23, {f32(24.0)}, v20")
        for kk in range(2):
            for i in range(4):
                a(f"v_cos_f32 v24, v21\nv_add_f32 v21, v21, v20\nv_cos_f32 v25, v21\nv_add_f32 v21, v21, v20\nv_cvt_pk_bf16_f32 v{68+4*kk+i}, v24, v25")
            if kk == 0: a("v_add_f32 v21, v21, v23")
        self.trig_setup(51, 1, 0, 16, 1.0 / 32)
        a("v_lshlrev_b32 v22, 2, v3\nv_cvt_f32_u32 v22, v22\nv_fma_f32 v21, v20, v22, v21")
        a(f"v_mul_f32 v23, {f32(12.0)}, v20")
        for i in range(4):
            a(f"v_cos_f32 v24, v21\nv_add_f32 v21, v21, v20\nv_cos_f32 v25, v21\nv_add_f32 v21, v21, v20\nv_cvt_pk_bf16_f32 v{76+i}, v24, v25")
            if i == 1: a("v_add_f32 v21, v21, v23")
        a("s_lshl_b32 s49, s51, 11\nv_xor_b32 v10, v2, v3\nv_lshlrev_b32 v10, 4, v10\nv_lshl_add_u32 v10, v3, 8, v10\nv_add_u32 v10, s49, v10\nv_xor_b32 v11, 64, v10\nv_add_u32 v11, 1024, v11")
        a(f"v_lshl_add_u32 v12, s51, 4, v2\nv_mul_u32_u24 v12, 1288, v12\nv_add_u32 v12, {L2}, v12")
        a("s_lshr_b32 s49, s50, 1\ns_mul_i32 s49, s49, 320\ns_and_b32 s52, s50, 1\ns_lshl_b32 s52, s52, 3\ns_add_u32 s49, s49, s52")
        a("v_lshrrev_b32 v13, 1, v3\nv_mul_u32_u24 v13, 640, v13\nv_and_b32 v14, 1, v3\nv_lshl_add_u32 v13, v14, 2, v13\nv_add3_u32 v13, v13, v12, s49")
        a("s_lshl_b32 s49, s50, 3\ns_sub_u32 s49, 36, s49\nv_lshlrev_b32 v14, 1, v3\nv_sub_u32 v14, s49, v14\nv_mul_u32_u24 v9, 57, v14\nv_lshrrev_b32 v9, 9, v9\nv_mul_u32_u24 v9, 9, v9\nv_sub_u32 v14, v14, v9")
        for e in range(9):
            a(f"v_add_u32 v9, {e}, v14\nv_subrev_u32 v15, 9, v9\nv_min_u32 v9, v9, v15\nv_lshl_add_u32 v{116+e}, v9, 5, v13")
        a(f"v_lshrrev_b32 v14, 2, v1\nv_mul_u32_u24 v14, 1288, v14\nv_and_b32 v9, 3, v1\nv_mul_u32_u24 v15, 320, v9\ns_lshl_b32 s49, s50, 4\ns_add_u32 s49, s49, {L2}\nv_add3_u32 v14, v14, v15, s49")
        a(f"v_lshrrev_b32 v15, 2, v2\nv_lshl_add_u32 v15, s51, 2, v15\nv_mul_u32_u24 v15, {19*16384}, v15\nv_lshl_add_u32 v15, v3, 6, v15\nv_lshl_add_u32 v15, v9, 4, v15")
        a(f"s_lshl_b32 s49, s50, 14\ns_lshl_b32 s52, s{S_J}, 8\ns_add_u32 s49, s49, s52\ns_add_u32 s49, s49, {VOFF}\nv_add_u32 v15, s49, v15")
        c = lambda k: math.cos(2 * math.pi * k / 9); s_ = lambda k: math.sin(2 * math.pi * k / 9)
        CN = {"c1": c(1), "c2": c(2), "c4": c(4), "s1": s_(1), "s2": s_(2), "s3": s_(3), "s4": s_(4), "mh": -0.5}
        CR = {}
        for i, (k, v) in enumerate(CN.items()):
            CR[k] = sr(60 + 2 * i, 2)
            a(f"s_mov_b32 s{60+2*i}, {f32(v)}\ns_mov_b32 s{61+2*i}, {f32(v)}")
        a("v_mov_b32 v9, 0xffff")
        a("s_waitcnt vmcnt(0)")
        self.stamp(1)
        for s in range(9):
            a(f"v_bfi_b32 v{50+2*s}, v9, v{32+2*s}, v{32+2*((s-1)%9)}\nv_bfi_b32 v{51+2*s}, v9, v{33+2*((s-2)%9)}, v{33+2*((s-3)%9)}")
            a(f"ds_write_b64 v{WA+s}, {vr(50+2*s,2)}")
        a("s_waitcnt lgkmcnt(0)\ns_barrier")
        order = [1, 8, 2, 7, 4, 5, 3, 6, 0]
        for i, b in enumerate(order):
            a(f"ds_read_b128 {vr(128+8*i,4)}, v10 offset:{4096*b}\nds_read_b128 {vr(132+8*i,4)}, v11 offset:{4096*b}")
        for i, b in enumerate(order):
            a(f"s_waitcnt lgkmcnt({min(15, 17-2*i)})")
            a(f"v_mfma_f32_16x16x32_bf16 {vr(80+4*b,4)}, v[68:71], {vr(128+8*i,4)}, 0")
            a(f"s_waitcnt lgkmcnt({min(15, 16-2*i)})")
            a(f"v_mfma_f32_16x16x32_bf16 {vr(80+4*b,4)}, v[72:75], {vr(132+8*i,4)}, {vr(80+4*b,4)}")
        self.stamp(2)
        def P(r): return vr(r, 2)
        add = lambda d, x, y: a(f"v_pk_add_f32 {P(d)}, {P(x)}, {P(y)}")
        sub = lambda d, x, y: a(f"v_pk_add_f32 {P(d)}, {P(x)}, {P(y)} neg_lo:[0,1] neg_hi:[0,1]")
        def fma(d, x, k, y, nk=False, ny=False):
            m = ""
            if nk or ny: m = f" neg_lo:[0,{int(nk)},{int(ny)}] neg_hi:[0,{int(nk)},{int(ny)}]"
            a(f"v_pk_fma_f32 {P(d)}, {P(x)}, {CR[k]}, {P(y)}{m}")
        ZR = [[0] * 9, [0] * 9]
        gens = []
        for h in range(2):
            g = lambda b, h=h: 80 + 4 * b + 2 * h
            T = 128 + 44 * h
            a1, a2, a3, a4, b1, b2, b3, b4, t, u, w, p, q, C0, C1, C2, C3, C4, S1, S2, S3, S4 = [T + 2 * i for i in range(22)]
            gens.append((g, (a1, a2, a3, a4, b1, b2, b3, b4, t, u, w, p, q, C0, C1, C2, C3, C4, S1, S2, S3, S4)))
        def both(fn):
            for h in range(2): fn(gens[h][0], *gens[h][1])
        both(lambda g, a1, a2, a3, a4, b1, b2, b3, b4, *r: (add(a1, g(1), g(8)), sub(b1, g(1), g(8))))
        both(lambda g, a1, a2, a3, a4, b1, b2, b3, b4, *r: (add(a2, g(2), g(7)), sub(b2, g(2), g(7))))
        both(lambda g, a1, a2, a3, a4, b1, b2, b3, b4, *r: (add(a4, g(4), g(5)), sub(b4, g(4), g(5))))
        both(lambda g, a1, a2, a3, a4, b1, b2, b3, b4, *r: (add(a3, g(3), g(6)), sub(b3, g(3), g(6))))
        def body(g, a1, a2, a3, a4, b1, b2, b3, b4, t, u, w, p, q, C0, C1, C2, C3, C4, S1, S2, S3, S4):
            add(t, a1, a2); sub(p, a1, a4); sub(q, a2, a4); add(t, t, a4); add(u, g(0), a3); fma(w, a3, "mh", g(0))
            add(C0, u, t); fma(C3, t, "mh", u)
            fma(C1, p, "c1", w); fma(C2, p, "c2", w); fma(C4, p, "c4", w)
            fma(C1, q, "c2", C1); fma(C2, q, "c4", C2); fma(C4, q, "c1", C4)
            sub(S3, b1, b2); add(p, b1, b2); add(q, b2, b4); a(f"v_pk_mul_f32 {P(b3)}, {P(b3)}, {CR['s3']}"); add(S3, S3, b4)
            fma(S1, p, "s1", b3); fma(S2, p, "s2", b3, ny=True); fma(S4, p, "s4", b3)
            a(f"v_pk_mul_f32 {P(S3)}, {P(S3)}, {CR['s3']}")
            fma(S1, q, "s4", S1); fma(S2, q, "s1", S2, nk=True); fma(S4, q, "s2", S4, nk=True)
        both(body)
        Ls = self.lab("Lsp")
        r0 = gens[0][1]; Cs = r0[13:18]; Ss = [None] + list(r0[18:22])
        a(f"s_cmp_lg_u32 s50, 0\ns_cbranch_scc1 {Ls}\ns_mov_b64 exec, 0xffff")
        for e in range(9):
            k = e if e <= 4 else 9 - e
            src = "0" if e == 0 else (f"v{Ss[k]+1}" if e <= 4 else f"-v{Ss[k]+1}")
            m = (e + 4) % 9
            off = (m >> 2) * 320 + (36 + ((m >> 1) & 1)) * 8 + (m & 1) * 4
            a(f"v_cvt_pk_bf16_f32 v{16+e}, v{Cs[k]+1}, {src}\nds_write_b32 v12, v{16+e} offset:{off}")
        for k in range(5): a(f"v_mov_b32 v{Cs[k]+1}, 0")
        for k in range(1, 5): a(f"v_mov_b32 v{Ss[k]+1}, 0")
        a(f"s_mov_b64 exec, -1\n{Ls}:")
        for h in range(2):
            r = gens[h][1]; C = r[13:18]; S = [None] + list(r[18:22])
            ZR[h][0] = C[0]
            for k in range(1, 5):
                ZR[h][k] = 80 + 4 * k + 2 * h; ZR[h][9 - k] = 80 + 4 * (9 - k) + 2 * h
        def combo(h, e):
            if e == 0: return
            r = gens[h][1]; C = r[13:18]; S = [None] + list(r[18:22])
            k = e if e <= 4 else 9 - e
            ng = "neg_lo:[0,1]" if e <= 4 else "neg_hi:[0,1]"
            a(f"v_pk_add_f32 {P(ZR[h][e])}, {P(C[k])}, {P(S[k])} op_sel:[0,1] op_sel_hi:[1,0] {ng}")
        for e in range(9):
            combo(0, e); combo(1, (e + 1) % 9)
            z0, z1 = ZR[0][e], ZR[1][(e + 1) % 9]
            a(f"v_cvt_pk_bf16_f32 v{32+2*e}, v{z0}, v{z1}\nv_cvt_pk_bf16_f32 v{33+2*e}, v{z0+1}, v{z1+1}")
            a(f"ds_write2_b32 v{116+e}, v{32+2*e}, v{33+2*e} offset0:0 offset1:4")
        a("s_waitcnt lgkmcnt(0)\ns_barrier")
        self.stamp(3)
        self.go_preload()
        for r in range(5):
            for T in range(2):
                for h2 in range(2):
                    a(f"ds_read_b64_tr_b16 {vr(128+8*r+4*T+2*h2,2)}, v14 offset:{64*r+8*T+20608*h2}")
        sc = "sc1" if self.mode == "fused" else ""
        Le = self.lab("Lse")
        for r in range(5):
            a(f"s_waitcnt lgkmcnt({min(15, 18-4*r)})")
            a(f"v_mfma_f32_16x16x32_bf16 {vr(176+8*r,4)}, {vr(128+8*r,4)}, v[76:79], 0")
            a(f"s_waitcnt lgkmcnt({min(15, 16-4*r)})")
            a(f"v_mfma_f32_16x16x32_bf16 {vr(180+8*r,4)}, {vr(132+8*r,4)}, v[76:79], 0")
        for r in range(5):
            if r == 4: a(f"s_cmp_eq_u32 s50, 3\ns_cbranch_scc1 {Le}")
            for i in range(4): a(f"v_cvt_pk_bf16_f32 v{32+4*r+i}, v{176+8*r+2*i}, v{177+8*r+2*i}")
            a(f"global_store_dwordx4 v15, {vr(32+4*r,4)}, {sr(WS,2)} {sc}")
            if r < 4: a("v_add_u32 v15, 0x10000, v15")
        a(f"{Le}:")
    def b_p2_setup(self):
        a = self.a
        a("v_and_b32 v2, 15, v1\nv_lshrrev_b32 v3, 4, v1")
        a(f"s_mul_i32 s50, s{S_J}, 57\ns_lshr_b32 s50, s50, 9\ns_mul_i32 s51, s50, 9\ns_sub_u32 s51, s{S_J}, s51")
        a(f"s_lshr_b32 s52, s{S_WAVE}, 2\ns_lshl_b32 s53, s50, 1\ns_add_u32 s53, s53, s52")
        a("s_and_b32 s54, s53, 15\ns_cmp_eq_u32 s54, 0\ns_cselect_b32 s54, 0, -1")
        a(f"s_and_b32 s49, s{S_WAVE}, 3\ns_lshl_b32 s49, s49, 9\ns_add_u32 s55, s49, s53")
        a(f"v_lshl_add_u32 v20, v2, 5, s55\nv_cvt_f32_u32 v20, v20\nv_mul_f32 v20, {f32(1.0/2048)}, v20\nv_lshlrev_b32 v22, 3, v3\nv_cvt_f32_u32 v22, v22\nv_mul_f32 v21, v20, v22\nv_mul_f32 v23, {f32(24.0)}, v20")
        for kk in range(2):
            for i in range(4):
                d = 4 * kk + i
                a(f"v_cos_f32 v24, v21\nv_sin_f32 v26, v21\nv_add_f32 v21, v21, v20\nv_cos_f32 v25, v21\nv_sin_f32 v27, v21\nv_add_f32 v21, v21, v20")
                a(f"v_cvt_pk_bf16_f32 v{64+d}, v24, v25\nv_cvt_pk_bf16_f32 v{80+d}, v26, v27\nv_cvt_pk_bf16_f32 v{72+d}, -v26, -v27")
                a(f"v_and_b32 v{88+d}, s54, v{64+d}\nv_and_b32 v{72+d}, s54, v{72+d}")
            if kk == 0: a("v_add_f32 v21, v21, v23")
        a(f"s_and_b32 s49, s50, 7\ns_mul_i32 s49, s49, 19\ns_lshl_b32 s60, s51, 1\ns_add_u32 s60, s60, s49\ns_lshl_b32 s60, s60, 14\ns_add_u32 s60, s60, {VOFF}")
        a("s_add_u32 s61, s60, 8192\ns_add_u32 s62, s60, 16384\ns_add_u32 s63, s60, 24576")
        a(f"s_add_u32 s49, s49, 18\ns_lshl_b32 s64, s49, 14\ns_add_u32 s64, s64, {VOFF}\ns_lshr_b32 s49, s51, 2\ns_lshl_b32 s49, s49, 6\ns_add_u32 s64, s64, s49\ns_and_b32 s49, s51, 3\ns_lshl_b32 s49, s49, 2\ns_add_u32 s64, s64, s49")
        a("v_lshlrev_b32 v4, 4, v0")
        a("v_bfe_u32 v9, v0, 2, 6\nv_and_b32 v10, 3, v0\nv_lshlrev_b32 v5, 8, v9\nv_lshl_add_u32 v5, v10, 4, v5")
        def rho(dst, src, tmp):
            a(f"v_and_b32 v{dst}, 35, v{src}\nv_bfe_u32 v{tmp}, v{src}, 2, 1\nv_lshl_add_u32 v{dst}, v{tmp}, 4, v{dst}\nv_bfe_u32 v{tmp}, v{src}, 3, 2\nv_lshl_add_u32 v{dst}, v{tmp}, 2, v{dst}")
        rho(7, 9, 11)
        a(f"v_mul_u32_u24 v7, 544, v7\nv_lshl_add_u32 v7, v10, 3, v7\nv_add_u32 v7, {L3+512}, v7")
        a("v_lshrrev_b32 v9, 4, v0")
        rho(6, 9, 11)
        a(f"v_mul_u32_u24 v6, 544, v6\nv_lshl_add_u32 v6, v10, 5, v6\nv_bfe_u32 v11, v0, 3, 1\nv_lshl_add_u32 v6, v11, 7, v6\nv_bfe_u32 v11, v0, 2, 1\nv_lshl_add_u32 v6, v11, 4, v6\nv_add_u32 v6, {L3}, v6")
        a("s_lshl_b32 s49, s52, 1\ns_cmp_eq_u32 s53, 16\ns_cselect_b32 s49, 1, s49\ns_lshl_b32 s65, s49, 5\ns_lshl_b32 s49, s49, 3")
        a(f"v_lshrrev_b32 v9, 2, v1\nv_mul_u32_u24 v9, 544, v9\nv_add_u32 v9, {L3}, v9\nv_and_b32 v10, 3, v1\nv_lshl_add_u32 v8, v10, 3, v9\nv_add_u32 v8, s65, v8")
        a("v_add_u32 v9, s49, v9\nv_cmp_eq_u32 vcc, 3, v10")
        for comp in range(2):
            for cs in range(2):
                a(f"v_add_u32 v11, {8+256*comp+32*cs}, v8\nv_add_u32 v28, {512+8*cs}, v9\nv_cndmask_b32 v{16+2*comp+cs}, v11, v28, vcc")
        a(f"s_lshl_b32 s49, s{S_WAVE}, 12\nv_lshrrev_b32 v11, 1, v2\nv_add_u32 v11, v11, v3\nv_and_b32 v11, 3, v11\nv_lshlrev_b32 v11, 4, v11\nv_lshl_add_u32 v20, v2, 6, v11\nv_add_u32 v20, s49, v20")
        a("v_lshrrev_b32 v9, 2, v1\nv_lshrrev_b32 v11, 3, v1\nv_add_u32 v21, v11, v10\nv_and_b32 v21, 3, v21\nv_sub_u32 v22, v11, v10\nv_add_u32 v22, 3, v22\nv_and_b32 v22, 3, v22")
        a("v_lshlrev_b32 v11, 6, v9\nv_add_u32 v11, s49, v11\nv_lshl_add_u32 v21, v21, 4, v11\nv_lshl_add_u32 v22, v22, 4, v11")
        a(f"v_lshl_add_u32 v9, v9, 5, s55\nv_sub_u32 v11, 2048, v9\nv_and_b32 v11, 2047, v11\nv_lshlrev_b32 v10, 4, v10\nv_add_u32 v10, 1152, v10\nv_mad_u32_u24 v23, v9, s68, v10\nv_mad_u32_u24 v24, v11, s68, v10".replace("v_lshl_add_u32 v9, v9, 5, s55", "s_movk_i32 s68, 2304\nv_lshl_add_u32 v9, v9, 5, s55"))
        a("s_lshl_b32 s66, s51, 7\ns_sub_u32 s67, 1088, s66\nv_add_u32 v25, s67, v23\nv_add_u32 v26, s67, v24\nv_add_u32 v23, s66, v23\nv_add_u32 v24, s66, v24")
    def b_p2(self, endlab):
        a = self.a
        sc = "sc1" if self.mode == "fused" else ""
        for i in range(4):
            a(f"buffer_load_dwordx4 {vr(96+4*i,4)}, v4, {sr(SRD_WS,4)}, s{60+i} offen {sc}")
        a(f"buffer_load_dword v112, v5, {sr(SRD_WS,4)}, s64 offen {sc}")
        for i in range(4):
            a(f"s_waitcnt vmcnt({4-i})\nds_write_b128 v6, {vr(96+4*i,4)} offset:{(i&1)*17408+(i>>1)*256}")
        a("s_waitcnt vmcnt(0)\nds_write_b32 v7, v112\ns_waitcnt lgkmcnt(0)\ns_barrier")
        self.stamp(5)
        a(f"s_cmp_eq_u32 s53, 17\ns_cbranch_scc1 {endlab}")
        M = {(0, 0): 64, (0, 1): 72, (1, 0): 80, (1, 1): 88}
        ACC = {(0, 0): 32, (0, 1): 36, (0, 2): 40, (1, 0): 44, (1, 1): 48, (1, 2): 52}
        jobs = [(comp, cs, kk, T) for kk in range(2) for cs in range(2) for comp in range(2) for T in range(3)]
        D = 7
        def rd(i):
            comp, cs, kk, T = jobs[i]
            for h in range(2):
                if T < 2: a(f"ds_read_b64_tr_b16 {vr(128+4*i+2*h,2)}, v8 offset:{kk*17408+h*8704+comp*256+T*128+cs*32}")
                else: a(f"ds_read_b64_tr_b16 {vr(128+4*i+2*h,2)}, v{16+2*comp+cs} offset:{kk*17408+h*8704}")
        for i in range(D): rd(i)
        first = set()
        for i, (comp, cs, kk, T) in enumerate(jobs):
            rem = min(len(jobs), i + D) - i - 1
            a(f"s_waitcnt lgkmcnt({2*rem})")
            c = ACC[(comp, T)]
            src = vr(c, 4) if (comp, T) in first else "0"
            first.add((comp, T))
            a(f"v_mfma_f32_16x16x32_bf16 {vr(c,4)}, {vr(128+4*i,4)}, {vr(M[(comp,cs)]+4*kk,4)}, {src}")
            if i + D < len(jobs): rd(i + D)
        a("v_cmp_eq_u32 vcc, 3, v3\nv_cndmask_b32 v52, v52, v53, vcc")
        for i in range(0, 8, 2):
            a(f"v_pk_add_f32 {vr(96+i,2)}, {vr(32+i,2)}, {vr(44+i,2)} neg_lo:[0,1] neg_hi:[0,1]\nv_pk_add_f32 {vr(106+i,2)}, {vr(32+i,2)}, {vr(44+i,2)}")
        a("v_sub_f32 v104, v40, v52\nv_add_f32 v114, v40, v52")
        Dm, Dp = 96, 106
        for x, (b, rev) in enumerate(((Dm, 0), (Dp, 1), (Dp, 0), (Dm, 1))):
            for i in range(4):
                if rev: a(f"v_cvt_pk_bf16_f32 v{128+4*x+i}, v{b+8-2*i}, v{b+7-2*i}")
                else: a(f"v_cvt_pk_bf16_f32 v{128+4*x+i}, v{b+2*i}, v{b+2*i+1}")
            a(f"ds_write_b128 v20, {vr(128+4*x,4)} offset:{L4+1024*x}")
        a("s_waitcnt lgkmcnt(0)")
        for x in range(4):
            a(f"ds_read_b128 {vr(144+4*x,4)}, v{21+(x&1)} offset:{L4+1024*x}")
        so = self.opt.get("b_out", "")
        ad = (23, 25, 24, 26)
        for x in range(4):
            if x == 2: a(f"s_cmp_eq_u32 s54, 0\ns_cbranch_scc1 {endlab}")
            a(f"s_waitcnt lgkmcnt({3-x})\nglobal_store_dwordx4 v{ad[x]}, {vr(144+4*x,4)}, {sr(OUT,2)} {so}")

    def dispatch(self, LA, LB1, LB2):
        a = self.a
        a(f"s_add_u32 s{S_J}, s48, 64\ns_cmp_eq_u32 s3, 0\ns_cbranch_scc1 {LB2}")
        a(f"s_sub_u32 s{S_J}, s2, 144\ns_cmp_ge_u32 s3, 27\ns_cbranch_scc1 {LB2}")
        a(f"s_sub_u32 s{S_J}, s2, 152\ns_cmp_ge_u32 s3, 19\ns_cbranch_scc1 {LB1}")
        a(f"s_mul_i32 s{S_J}, s48, 18\ns_add_u32 s{S_J}, s{S_J}, s3\ns_sub_u32 s{S_J}, s{S_J}, 1")
    def kd(self, kname):
        self.a(f""".section .rodata,"a"
.p2align 6
.amdhsa_kernel {kname}
.amdhsa_next_free_vgpr 256
.amdhsa_next_free_sgpr 102
.amdhsa_accum_offset 256
.amdhsa_group_segment_fixed_size 0
.amdhsa_kernarg_size 112
.amdhsa_user_sgpr_count 2
.amdhsa_user_sgpr_kernarg_segment_ptr 1
.amdhsa_system_sgpr_workgroup_id_x 1
.amdhsa_float_denorm_mode_32 3
.end_amdhsa_kernel
.text""")
    def a_p2_all(self, fin, fused):
        a = self.a
        LQ = self.lab("LAq"); LE = self.lab("LAe")
        self.a_hprep_finish()
        a(f"s_bitcmp1_b32 s{S_J}, 0\ns_cbranch_scc1 {LQ}")
        for part in range(2):
            if part: a(f"{LQ}:")
            self.a_resident(part)
            self.a_p2_addr(part)
            a("s_waitcnt lgkmcnt(0)")
            self.stamp(3)
            if fused:
                a(f"v_mov_b32 v120, v13\ns_and_b32 s48, s{S_J}, -16")
                self.poll(48, 16, False)
                a("v_mov_b32 v13, v120")
            else:
                a("s_barrier")
            self.stamp(4)
            self.a_kv_load(part)
            self.stamp(5)
            self.a_conv(part)
            if part == 0: a(f"s_branch {LE}")
        a(f"{LE}:\ns_nop 7")
        self.stamp(6)
        self.a_epilogue()
        a(f"s_branch {fin}")
    def build(self):
        a = self.a
        hdr = open("cdna_kernels/" + NAME + ".s.ref").read().split("\n")
        head = [l for l in hdr if l.startswith(";") and "@launch" not in l and "Override" not in l and "grid=ceil" not in l][:15]
        cb = self.opt.get("codebytes", 16384)
        if self.mode == "two":
            head += [f"; @launch kernel=p1_kernel grid=({NWG},1,1) block=(512,1,1) lds={LDS_BYTES}", f"; @launch kernel=p2_kernel grid=({NWG},1,1) block=(512,1,1) lds={LDS_BYTES}"]
            a('.amdgcn_target "amdgcn-amd-amdhsa--gfx950"\n.text')
            self.prologue("p1_kernel", "L1_end", 4096)
            self.dispatch("x", "L1_b1", "L1_fin")
            self.a_p1_loads(); self.a_p1_compute(0); a("s_branch L1_fin")
            a("L1_b1:"); self.b_p1()
            a("L1_fin:\ns_waitcnt lgkmcnt(0)"); self.dump_stamps(0)
            a("L1_end:\ns_endpgm"); self.kd("p1_kernel")
            self.prologue("p2_kernel", "L2_end", 12288)
            self.dispatch("x", "L2_b2", "L2_b2")
            self.ptr_wait(); self.a_h_loads(); self.a_hprep_setup()
            for p in range(4):
                a(f"s_waitcnt vmcnt({9-3*p})"); self.a_hprep_pass(p)
            self.a_p2_all("L2_fin", False)
            a("L2_b2:"); self.ptr_wait(); self.b_p2_setup(); self.b_p2("L2_fin")
            a("L2_fin:"); self.dump_stamps(1)
            a("L2_end:\ns_endpgm\n.fill 4096, 4, 0xbf800000"); self.kd("p2_kernel")
        else:
            kn = NAME + "_kernel"
            head += [f"; @launch grid=({NWG},1,1) block=(512,1,1) lds={LDS_BYTES}"]
            a('.amdgcn_target "amdgcn-amd-amdhsa--gfx950"\n.text')
            self.prologue(kn, "L_end", cb)
            self.dispatch("x", "L_b1", "L_b2")
            self.a_p1_loads(); nh = self.a_h_loads(); self.a_hprep_setup()
            self.a_p1_compute(nh)
            self.stamp(1)
            npre = self.opt.get("npre", 3)
            for p in range(npre):
                a(f"s_waitcnt vmcnt({9-3*p+3})"); self.a_hprep_pass(p)
            a("s_waitcnt vmcnt(0)")
            self.publish(S_J)
            self.stamp(2)
            for p in range(npre, 4): self.a_hprep_pass(p)
            self.a_p2_all("L_fin", True)
            a("L_b1:"); self.b_p1()
            a(f"s_waitcnt vmcnt(0)\ns_add_u32 s48, s{S_J}, 144")
            self.publish(48)
            a("s_branch L_b2go")
            a("L_b2:"); self.ptr_wait()
            a(f"s_cmp_lg_u32 s2, 0\ns_cbranch_scc1 L_b2w\nv_min_u32 v12, 207, v0\nv_lshlrev_b32 v12, 7, v12\nv_add_u32 v12, {FLAGOFF}, v12\nv_mov_b32 v13, 0")
            a(f"global_store_dword v12, v13, {sr(WS,2)} sc0 sc1\ns_waitcnt vmcnt(0)\ns_barrier\nv_mov_b32 v12, 1\ns_cmp_lg_u32 s{S_WAVE}, 0\ns_cbranch_scc1 L_b2go\ns_mov_b64 exec, 1")
            a(f"global_store_dword v13, v12, {sr(DBG,2)} sc0 sc1\ns_mov_b64 exec, -1\ns_branch L_b2go")
            a(f"L_b2w:\ns_cmp_lg_u32 s{S_WAVE}, 0\ns_cbranch_scc1 L_b2go")
            self.wait_go()
            a("L_b2go:")
            self.b_p2_setup()
            a("s_movk_i32 s48, 144")
            self.poll(48, 64, False)
            self.stamp(4)
            self.b_p2("L_fin")
            a("L_fin:"); self.dump_stamps(0)
            a("L_end:\ns_endpgm\n.fill 1024, 4, 0xbf800000"); self.kd(kn)
        return "\n".join(head) + "\n" + a.text()

if __name__ == "__main__":
    import argparse
    ap = argparse.ArgumentParser()
    ap.add_argument("--mode", default="fused"); ap.add_argument("--stamps", action="store_true"); ap.add_argument("-o", default="/dev/stdout")
    ap.add_argument("--opt", nargs="*", default=[])
    args = ap.parse_args()
    opt = {}
    for o in args.opt:
        k, v = o.split("=", 1)
        opt[k] = int(v) if v.lstrip("-").isdigit() else v
    open(args.o, "w").write(G(args.mode, args.stamps, opt).build())
```

```python
import sys, math, struct
from asmlib import Asm, vr, sr

NAME = "concat_heads__ssm_conv_h3__spectral_fnet__prompt"
NWG = 225
KVOFF = 0
VOFF = 0x240000
FLAGOFF = 0x500000
STAMPOFF = 0x600000
WSBYTES = 268435456
CS = 16944
KVL = 12288
L1, L2, L3, L4 = 0, 36864, 78080, 0
LDS_BYTES = 8 * CS

def f32(x): return "0x%08x" % struct.unpack("<I", struct.pack("<f", x))[0]

S_WAVE, S_J = 6, 7
Q, K, V, SH, H, DD, X, OUT, DBG, WS = 8, 10, 12, 14, 16, 18, 20, 30, 32, 34
SRD_K, SRD_V, SRD_H, SRD_WS = 36, 40, 44, 56

class G:
    def __init__(self, mode="fused", stamps=False, opt=None):
        self.a = Asm(); self.mode = mode; self.stamps = stamps; self.opt = opt or {}
        self.nlab = 0
    def lab(self, p="L"):
        self.nlab += 1; return f"{p}_{self.nlab}"
    def stamp(self, i):
        if self.opt.get("amp") == i:
            self.a("s_memrealtime s[98:99]\ns_waitcnt lgkmcnt(0)")
        if self.stamps:
            self.a(f"s_memrealtime s[{80+2*i}:{81+2*i}]\ns_waitcnt lgkmcnt(0)")
    def dump_stamps(self, slot):
        a = self.a
        if not self.stamps: return
        L = self.lab("Lst")
        a("s_waitcnt vmcnt(0)")
        self.stamp(7)
        for i in range(8): a(f"v_mov_b32 v{2+i}, s{80+2*i}")
        a(f"s_lshl_b32 s3, s2, 3\ns_add_u32 s3, s3, s{S_WAVE}\ns_lshl_b32 s3, s3, 5\ns_add_u32 s3, s3, {STAMPOFF + slot*65536}\nv_mov_b32 v10, s3\ns_mov_b64 exec, 1")
        a(f"global_store_dwordx4 v10, v[2:5], {sr(WS,2)}\nglobal_store_dwordx4 v10, v[6:9], {sr(WS,2)} offset:16")
        a(f"{L}:")

    def prologue(self, kname, endlab, codebytes):
        a = self.a
        a(f".globl {kname}\n.p2align 8\n.type {kname},@function\n{kname}:")
        a(f"s_load_dwordx16 s[8:23], s[0:1], 0\ns_load_dwordx8 s[24:31], s[0:1], 64\ns_load_dwordx4 s[32:35], s[0:1], 96")
        if self.stamps:
            for i in range(8): a(f"s_mov_b32 s{80+2*i}, 0")
            a("s_memrealtime s[80:81]")
        if self.opt.get("amp") is not None: a("s_memrealtime s[96:97]")
        a(f"s_cmp_ge_u32 s2, {NWG}\ns_cbranch_scc1 {endlab}")
        if not self.opt.get("nopf"): a(f"s_getpc_b64 s[4:5]\nv_lshlrev_b32 v2, 7, v0\nv_min_u32 v2, {codebytes}, v2\nglobal_load_dword v255, v2, s[4:5]")
        a(f"v_lshrrev_b32 v2, 6, v0\nv_and_b32 v1, 63, v0\nv_readfirstlane_b32 s{S_WAVE}, v2")
        a(f"s_mov_b32 s{SRD_K+2}, 2359296\ns_mov_b32 s{SRD_K+3}, 0x20000\ns_mov_b32 s{SRD_V+2}, 2359296\ns_mov_b32 s{SRD_V+3}, 0x20000")
        a(f"s_mov_b32 s{SRD_H+2}, 2359296\ns_mov_b32 s{SRD_H+3}, 0x20000\ns_mov_b32 s{SRD_WS+2}, {WSBYTES}\ns_mov_b32 s{SRD_WS+3}, 0x20000")
        a("s_lshr_b32 s3, s2, 3\ns_and_b32 s48, s2, 7")
    def ptr_wait(self):
        a = self.a
        a("s_waitcnt lgkmcnt(0)")
        a(f"s_mov_b64 {sr(SRD_K,2)}, {sr(K,2)}\ns_mov_b64 {sr(SRD_V,2)}, {sr(V,2)}\ns_mov_b64 {sr(SRD_H,2)}, {sr(H,2)}\ns_mov_b64 {sr(SRD_WS,2)}, {sr(WS,2)}")

    def go_preload(self):
        if self.mode == "fused":
            self.a(f"v_mov_b32 v126, 0\nglobal_load_dword v127, v126, {sr(DBG,2)} sc0 sc1")
    def wait_go(self, pre=False):
        a = self.a; L = self.lab("Lgo"); E = self.lab("Lgox")
        if pre: a(f"v_cmp_eq_u32 vcc, 0, v127\ns_cbranch_vccz {E}")
        a(f"v_mov_b32 v12, 0\ns_mov_b32 s49, 0\n{L}:\nglobal_load_dword v13, v12, {sr(DBG,2)} sc0 sc1\ns_waitcnt vmcnt(0)")
        a(f"v_cmp_eq_u32 vcc, 0, v13\ns_add_u32 s49, s49, 1\ns_cmp_gt_u32 s49, 0x100000\ns_cbranch_scc1 {E}\ns_cbranch_vccnz {L}\n{E}:")
    def publish(self, sflag):
        a = self.a; L = self.lab("Lpub")
        a(f"s_barrier\ns_cmp_lg_u32 s{S_WAVE}, 0\ns_cbranch_scc1 {L}")
        self.wait_go(True)
        a(f"s_lshl_b32 s49, s{sflag}, 7\ns_add_u32 s49, s49, {FLAGOFF}\nv_mov_b32 v12, s49\nv_mov_b32 v13, 1\ns_mov_b64 exec, 1")
        a(f"global_store_dword v12, v13, {sr(WS,2)} sc0 sc1\ns_mov_b64 exec, -1\n{L}:")
    def poll(self, sfirst, nflags, need_go):
        a = self.a; L = self.lab("Lpoll"); E = self.lab("Lpollx")
        a(f"s_cmp_lg_u32 s{S_WAVE}, 0\ns_cbranch_scc1 {E}")
        if need_go: self.wait_go()
        a(f"v_and_b32 v12, {nflags-1}, v1\nv_add_u32 v12, s{sfirst}, v12\nv_lshlrev_b32 v12, 7, v12\nv_add_u32 v12, {FLAGOFF}, v12\ns_mov_b32 s49, 0")
        a(f"{L}:\nglobal_load_dword v13, v12, {sr(WS,2)} sc0 sc1\ns_waitcnt vmcnt(0)")
        a(f"v_cmp_ne_u32 vcc, 1, v13\ns_add_u32 s49, s49, 1\ns_cmp_gt_u32 s49, 0x100000\ns_cbranch_scc1 {E}\ns_cbranch_vccnz {L}\n{E}:\ns_barrier")

    HRAW = 32
    def a_h_loads(self):
        a = self.a
        a(f"s_lshr_b32 s50, s{S_J}, 1\ns_lshl_b32 s50, s50, 3\ns_add_u32 s50, s50, s{S_WAVE}")
        a(f"s_lshl_b32 s51, s50, 12\nv_lshlrev_b32 v8, 4, v1\nv_and_b32 v9, 48, v8")
        a(f"s_and_b32 s52, s50, -2\ns_lshl_b32 s52, s52, 1\ns_load_dword s53, {sr(DD,2)}, s52")
        nt = self.opt.get("h_nt", "")
        a(f"buffer_load_dwordx4 v[68:71], v9, {sr(SRD_H,4)}, s51 offen")
        for p in range(4):
            a(f"buffer_load_dword v{64+p}, v8, {sr(SRD_H,4)}, s51 offen offset:{32+1024*p} {nt}")
            a(f"buffer_load_dwordx4 {vr(32+8*p,4)}, v8, {sr(SRD_H,4)}, s51 offen offset:{36+1024*p} {nt}")
            a(f"buffer_load_dwordx4 {vr(36+8*p,4)}, v8, {sr(SRD_H,4)}, s51 offen offset:{40+1024*p} {nt}")
        return 13
    def a_p1_loads(self):
        a = self.a
        nt = self.opt.get("kv_nt", "nt")
        a(f"s_lshr_b32 s48, s{S_J}, 4\ns_and_b32 s49, s{S_J}, 15\ns_lshl_b32 s50, s49, 3\ns_add_u32 s50, s50, s{S_WAVE}")
        a(f"s_mul_i32 s51, s50, {16*1152}\ns_lshl_b32 s52, s48, 7\ns_add_u32 s51, s51, s52\ns_movk_i32 s54, 4608")
        a("v_lshrrev_b32 v2, 5, v1\nv_and_b32 v7, 31, v1\nv_mul_u32_u24 v4, 9216, v2\nv_lshl_add_u32 v4, v7, 2, v4\nv_add_u32 v4, s51, v4\nv_add_u32 v5, 0xfffff280, v4")
        a("s_lshl_b32 s52, s48, 9\nv_lshlrev_b32 v6, 4, v7\nv_add_u32 v6, s52, v6")
        self.ptr_wait()
        a(f"global_load_dwordx4 v[128:131], v6, {sr(SH,2)}")
        for i in range(3):
            a(f"buffer_load_dword v{132+i}, v5, {sr(SRD_K,4)}, 0 offen offset:{1152*i} {nt}")
        for t in range(8):
            so = "0" if t < 4 else "s54"
            a(f"buffer_load_dword v{135+t}, v4, {sr(SRD_K,4)}, {so} offen offset:{1152*(t&3)} {nt}")
            a(f"buffer_load_dword v{143+t}, v4, {sr(SRD_V,4)}, {so} offen offset:{1152*(t&3)} {nt}")
        a(f"s_lshl_b32 s52, s48, 18\ns_lshl_b32 s50, s50, 8\ns_add_u32 s52, s52, s50\nv_lshrrev_b32 v6, 2, v7\nv_lshlrev_b32 v6, 15, v6")
        a("v_and_b32 v7, 3, v7\nv_lshlrev_b32 v7, 4, v7\nv_lshl_add_u32 v7, v2, 6, v7\nv_add3_u32 v6, v6, v7, s52")
    def a_p1_compute(self, nh):
        a = self.a
        W, KF, VF, U, O = 152, 160, 182, 184, 200
        def unpack(dst, src):
            a(f"v_lshlrev_b32 v{dst}, 16, v{src}\nv_and_b32 v{dst+1}, 0xffff0000, v{src}")
        a(f"s_waitcnt vmcnt({16+nh})")
        a(f"v_lshlrev_b32 v{W}, 16, v128\nv_lshlrev_b32 v{W+1}, 16, v130\nv_and_b32 v{W+2}, 0xffff0000, v128\nv_and_b32 v{W+3}, 0xffff0000, v130")
        a(f"v_lshlrev_b32 v{W+4}, 16, v129\nv_lshlrev_b32 v{W+5}, 16, v131\nv_and_b32 v{W+6}, 0xffff0000, v129\nv_and_b32 v{W+7}, 0xffff0000, v131")
        for i in range(3): unpack(KF + 2 * i, 132 + i)
        for t in range(8):
            u = U + 2 * t
            a(f"v_pk_mul_f32 {vr(u,2)}, {vr(W+6,2)}, {vr(KF+2*t,2)}")
            a(f"v_pk_fma_f32 {vr(u,2)}, {vr(W+4,2)}, {vr(KF+2*t+2,2)}, {vr(u,2)}")
            a(f"v_pk_fma_f32 {vr(u,2)}, {vr(W+2,2)}, {vr(KF+2*t+4,2)}, {vr(u,2)}")
            a(f"s_waitcnt vmcnt({2*(7-t)+nh})")
            unpack(KF + 2 * t + 6, 135 + t)
            unpack(VF, 143 + t)
            a(f"v_pk_fma_f32 {vr(u,2)}, {vr(W,2)}, {vr(KF+2*t+6,2)}, {vr(u,2)}")
            a(f"v_pk_mul_f32 {vr(u,2)}, {vr(u,2)}, {vr(VF,2)}")
            if t & 1:
                d = 3 - (t >> 1)
                a(f"v_cvt_pk_bf16_f32 v{O+d}, v{u}, v{u-2}\nv_cvt_pk_bf16_f32 v{O+4+d}, v{u+1}, v{u-1}")
        sc = "sc1" if self.mode == "fused" else ""
        a(f"global_store_dwordx4 v6, {vr(O,4)}, {sr(WS,2)} {sc}\nglobal_store_dwordx4 v6, {vr(O+4,4)}, {sr(WS,2)} offset:128 {sc}")
        self.go_preload()
    def a_hprep_setup(self):
        a = self.a
        a(f"s_mul_i32 s55, s{S_WAVE}, {CS}\nv_lshrrev_b32 v10, 2, v1\nv_lshlrev_b32 v10, 8, v10\nv_add3_u32 v10, v10, v9, s55")
        a(f"v_min_u32 v11, {29*16}, v8\nv_add_u32 v11, s55, v11")
        for i in range(16, 32): a(f"v_mov_b32 v{i}, 0")
        a(f"ds_write_b128 v11, v[16:19] offset:{KVL+4096}")
    def a_hprep_pass(self, p):
        a = self.a
        b, c, w0 = 32 + 8 * p, 36 + 8 * p, 64 + p
        T = 72 + 8 * (p & 1)
        a(f"v_alignbit_b32 v{T}, v{b}, v{w0}, 16")
        for i in range(1, 4): a(f"v_alignbit_b32 v{T+i}, v{b+i}, v{b+i-1}, 16")
        for i in range(4): a(f"v_alignbit_b32 v{T+4+i}, v{c+i}, v{b+i}, 16")
        a(f"ds_write_b128 v10, {vr(b,4)} offset:{4096*p+64}\nds_write_b128 v10, {vr(c,4)} offset:{4096*p+192}")
        a(f"ds_write_b128 v10, {vr(T,4)} offset:{4096*p}\nds_write_b128 v10, {vr(T+4,4)} offset:{4096*p+128}")
    def a_hprep_finish(self):
        a = self.a
        a(f"v_add_u32 v11, s55, v9\nds_write_b128 v11, v[68:71] offset:{KVL+4576}")
        a("v_and_b32 v2, 15, v1\nv_lshrrev_b32 v3, 4, v1")
        a("v_lshrrev_b32 v4, 2, v2\nv_lshl_add_u32 v4, v3, 1, v4\nv_add_u32 v5, 1, v4\nv_and_b32 v11, 3, v2\nv_lshlrev_b32 v11, 6, v11\nv_add_u32 v11, s55, v11")
        for r in (4, 5):
            a(f"v_lshrrev_b32 v12, 3, v{r}\nv_and_b32 v{r}, 7, v{r}\nv_lshlrev_b32 v{r}, 3, v{r}\nv_lshl_add_u32 v{r}, v12, 8, v{r}\nv_add_u32 v{r}, v{r}, v11")
        a(f"v_sub_u32 v6, 15, v2\nv_lshlrev_b32 v6, 5, v6\nv_lshl_add_u32 v6, v3, 4, v6\nv_add_u32 v6, s55, v6\nv_add_u32 v6, {KVL}, v6")
        a(f"v_lshl_add_u32 v11, v3, 3, v2\nv_lshlrev_b32 v12, 1, v11\nv_add_u32 v12, s55, v12\ns_waitcnt lgkmcnt(0)\nds_read_b128 v[88:91], v12 offset:{KVL+4576-30}")
        a("s_bitcmp1_b32 s50, 0\ns_cselect_b32 s52, 16, 0\ns_lshr_b32 s53, s53, s52\ns_and_b32 s53, s53, 0xffff")
        a("v_sub_u32 v11, 15, v11\nv_and_b32 v12, 1, v11\nv_lshlrev_b32 v12, 4, v12\nv_lshlrev_b32 v12, v12, s53\nv_ashrrev_i32 v11, 1, v11")
        for i in range(4):
            a(f"v_cmp_eq_u32 vcc, {i}, v11\nv_cndmask_b32 v{92+i}, 0, v12, vcc")
    def a_read_tile(self, dst, n):
        self.a(f"ds_read_b64 {vr(dst,2)}, v4 offset:{(n-1)*256}\nds_read_b64 {vr(dst+2,2)}, v5 offset:{(n-1)*256}")
    def a_resident(self, part):
        a = self.a
        js = (4, 5, 6, 7) if part == 0 else (4, 5)
        for j in js:
            for rho in range(8):
                self.a_read_tile(128 + 32 * (j - 4) + 4 * rho, 8 * j + rho)
        for j in (1, 2, 3): self.a_read_tile(64 + 4 * j, 8 * j)
    def a_kv_load(self, part):
        a = self.a
        n = 4 if part == 0 else 3
        sc = "sc1" if self.mode == "fused" else ""
        for i in range(n):
            a(f"buffer_load_dwordx4 {vr(104+4*i,4)}, v7, {sr(SRD_WS,4)}, s{60+i} offen {sc}")
        for i in range(n):
            a(f"s_waitcnt vmcnt({n-1-i})\nds_write_b128 v13, {vr(104+4*i,4)} offset:{3072-1024*i}")
        a("s_waitcnt lgkmcnt(0)\ns_barrier")
        a(f"global_load_dwordx4 v[96:99], v14, {sr(Q,2)}\nv_add_u32 v14, {64*1152}, v14\nglobal_load_dwordx4 v[100:103], v14, {sr(Q,2)}")
    def a_p2_addr(self, part):
        a = self.a
        tiles = self.tiles(part)
        a(f"s_lshr_b32 s48, s{S_J}, 1\ns_lshl_b32 s60, s48, 15\ns_add_u32 s61, s60, 8192\ns_add_u32 s62, s60, 16384\ns_add_u32 s63, s60, 24576\nv_lshlrev_b32 v7, 4, v0")
        a(f"v_and_b32 v11, 3, v0\nv_bfe_u32 v12, v0, 3, 1\nv_lshl_add_u32 v11, v11, 1, v12\nv_mul_u32_u24 v13, {CS}, v11")
        a(f"v_lshrrev_b32 v11, 4, v0\nv_bfe_u32 v12, v0, 2, 1\nv_lshl_add_u32 v11, v11, 1, v12\nv_sub_u32 v11, 63, v11\nv_lshl_add_u32 v13, v11, 4, v13\nv_add_u32 v13, {KVL}, v13")
        a(f"s_lshr_b32 s49, s{S_WAVE}, 1")
        if part == 0:
            a("s_cmp_ge_u32 s49, 2\ns_cselect_b32 s51, 4, 0\ns_add_u32 s51, s51, s49")
        else:
            a("s_add_u32 s51, s49, 2")
        a(f"s_lshl_b32 s51, s51, 1\ns_and_b32 s52, s{S_WAVE}, 1\ns_add_u32 s51, s51, s52\ns_lshl_b32 s51, s51, 7\nv_add_u32 v11, s51, v1")
        a("s_lshl_b32 s48, s48, 4\nv_mul_u32_u24 v14, 1152, v11\nv_add_u32 v14, s48, v14\nv_mul_u32_u24 v15, 2304, v11\nv_add_u32 v15, s48, v15")
        a("v_mul_u32_u24 v8, 192, v3\nv_lshl_add_u32 v8, v2, 3, v8\nv_add_u32 v8, s55, v8")
        a(f"v_bfe_u32 v11, v1, 2, 2\nv_mul_u32_u24 v9, {CS}, v11\nv_and_b32 v11, 3, v1\nv_mul_u32_u24 v11, 192, v11\nv_lshl_add_u32 v11, v3, 3, v11")
        a(f"s_mul_i32 s49, s49, 768\ns_lshl_b32 s52, s52, 6\ns_add_u32 s49, s49, s52\nv_add3_u32 v9, v9, v11, s49\nv_add_u32 v10, {4*CS}, v9")
    def tiles(self, part): return [0, 1, 6, 7] if part == 0 else [2, 3, 4, 5]
    def a_conv(self, part):
        a = self.a
        tiles = self.tiles(part)
        acc = {t: 16 + 4 * i for i, t in enumerate(tiles)}
        if part == 0:
            order = [(4,2),(5,2),(5,1),(6,1),(6,0),(7,0),(0,1),(0,0),(1,0),(0,7),(0,6),(1,6),(1,5),(2,5),(2,4),(3,4),(3,3),(4,3)]
        else:
            order = [(0,5),(0,4),(0,3),(0,2),(1,4),(1,3),(1,2),(1,1),(2,3),(2,2),(2,1),(2,0),(3,2),(3,1),(3,0),(4,1),(4,0),(5,0)]
        assert all((j + m) in acc for j, m in order) and len(set(order)) == 18
        issued = 0
        done = 0
        ready = {}
        def rdB(m, rho):
            nonlocal issued
            a(f"ds_read_b128 {vr(32+4*m,4)}, v6 offset:{3552-512*m+32*(2*rho+1)}")
            issued += 1; ready[("B", m)] = issued
        def rdA(j, rho):
            nonlocal issued
            self.a_read_tile(64 + 4 * j, 8 * j + rho)
            issued += 2; ready[("A", j)] = issued
        def wait(*ops):
            nonlocal done
            n = max(ready.get(o, 0) for o in ops)
            if n > done:
                a(f"s_waitcnt lgkmcnt({min(issued-n,15)})")
                done = max(n, issued - 15) if issued - n > 15 else n
        seen = []
        for j, m in order:
            if m not in seen: seen.append(m); rdB(m, 0)
        for rho in range(8):
            lastA = {j: i for i, (j, m) in enumerate(order)}
            lastB = {m: i for i, (j, m) in enumerate(order)}
            for i, (j, m) in enumerate(order):
                if j >= 4: ra = 128 + 32 * (j - 4) + 4 * rho; wait(("B", m))
                elif j == 0 and rho == 0: ra = 88; wait(("B", m))
                else: ra = 64 + 4 * j; wait(("A", j), ("B", m))
                c = acc[j + m]
                a(f"v_mfma_f32_16x16x32_bf16 {vr(c,4)}, {vr(ra,4)}, {vr(32+4*m,4)}, {vr(c,4)}")
                if j == 0 and rho == 0:
                    a(f"v_mfma_f32_16x16x32_bf16 {vr(c,4)}, v[92:95], {vr(32+4*m,4)}, {vr(c,4)}")
                if rho < 7:
                    if lastB[m] == i: rdB(m, rho + 1)
                    if lastA[j] == i and j < 4: rdA(j, rho + 1)
    def a_epilogue(self):
        a = self.a
        for i in range(4):
            c = 16 + 4 * i
            a(f"v_cvt_pk_bf16_f32 v{32+2*i}, v{c}, v{c+1}\nv_cvt_pk_bf16_f32 v{33+2*i}, v{c+2}, v{c+3}\nds_write_b64 v8, {vr(32+2*i,2)} offset:{768*i}")
        a("s_waitcnt lgkmcnt(0)\ns_barrier")
        for jj in range(2):
            a(f"ds_read_b64_tr_b16 {vr(40+4*jj,2)}, v9 offset:{32*jj}\nds_read_b64_tr_b16 {vr(42+4*jj,2)}, v10 offset:{32*jj}")
        a("s_waitcnt vmcnt(0)")
        for jj in range(2):
            for i in range(4):
                a(f"v_lshlrev_b32 v{48+8*jj+2*i}, 16, v{96+4*jj+i}\nv_and_b32 v{49+8*jj+2*i}, 0xffff0000, v{96+4*jj+i}")
        for jj in range(2):
            a(f"s_waitcnt lgkmcnt({2-2*jj})")
            for i in range(4):
                z = 40 + 4 * jj + i; t = 64 + 2 * i
                a(f"v_lshlrev_b32 v{t}, 16, v{z}\nv_and_b32 v{t+1}, 0xffff0000, v{z}\nv_pk_mul_f32 {vr(t,2)}, {vr(t,2)}, {vr(48+8*jj+2*i,2)}\nv_cvt_pk_bf16_f32 v{72+4*jj+i}, v{t}, v{t+1}")
            a(f"global_store_dwordx4 v15, {vr(72+4*jj,4)}, {sr(OUT,2)} {self.opt.get('a_out','')}")
            if jj == 0: a(f"v_add_u32 v15, {64*2304}, v15")

    def trig_setup(self, sX, mul, mask, special, scale):
        a = self.a
        a(f"s_lshl_b32 s49, s{sX}, 3\nv_lshrrev_b32 v20, 1, v2\nv_add_u32 v20, s49, v20\nv_and_b32 v21, 1, v2\nv_cvt_f32_u32 v21, v21\nv_mul_f32 v21, {f32(-0.25)}, v21")
        a(f"v_lshl_add_u32 v22, s{sX}, 4, v2")
        if mul != 1: a(f"v_mul_u32_u24 v20, {mul}, v20\nv_and_b32 v20, {mask}, v20")
        a(f"v_cmp_eq_u32 vcc, 1, v22\nv_cndmask_b32 v20, v20, {special}, vcc\nv_cndmask_b32 v21, v21, 0, vcc".replace(f"v_cndmask_b32 v20, v20, {special}, vcc", f"v_cndmask_b32_e64 v20, v20, {special}, vcc").replace("v_cndmask_b32 v21, v21, 0, vcc", "v_cndmask_b32_e64 v21, v21, 0, vcc"))
        a(f"v_cvt_f32_u32 v20, v20\nv_mul_f32 v20, {f32(scale)}, v20")
    def b_p1(self):
        a = self.a
        nt = self.opt.get("x_nt", "nt")
        a(f"v_lshrrev_b32 v4, 4, v0\nv_and_b32 v5, 15, v0\nv_lshlrev_b32 v6, 6, v4\nv_add_u32 v6, s{S_J}, v6\nv_mul_u32_u24 v6, 1152, v6\nv_lshl_add_u32 v6, v5, 3, v6")
        self.ptr_wait()
        for p in range(9):
            a(f"global_load_dwordx2 {vr(32+2*p,2)}, v6, {sr(X,2)} offset:{128*p} {nt}")
        WA = 200
        a("v_lshrrev_b32 v7, 1, v5\nv_and_b32 v8, 15, v4\nv_xor_b32 v8, v8, v7\nv_lshlrev_b32 v8, 4, v8\nv_lshl_add_u32 v8, v7, 8, v8\nv_and_b32 v7, 1, v5\nv_lshl_add_u32 v8, v7, 3, v8\nv_lshrrev_b32 v7, 4, v4\nv_lshl_add_u32 v8, v7, 11, v8")
        a("v_lshlrev_b32 v7, 2, v5\nv_mul_u32_u24 v9, 57, v7\nv_lshrrev_b32 v9, 9, v9\nv_mul_u32_u24 v9, 9, v9\nv_sub_u32 v7, v7, v9")
        for s in range(9):
            a(f"v_add_u32 v9, {s}, v7\nv_subrev_u32 v10, 9, v9\nv_min_u32 v9, v9, v10\nv_lshl_add_u32 v{WA+s}, v9, 12, v8")
        a("v_and_b32 v2, 15, v1\nv_lshrrev_b32 v3, 4, v1")
        a(f"s_lshr_b32 s50, s{S_WAVE}, 1\ns_and_b32 s51, s{S_WAVE}, 1")
        self.trig_setup(50, 57, 63, 32, 1.0 / 64)
        a("v_lshlrev_b32 v22, 3, v3\nv_cvt_f32_u32 v22, v22\nv_fma_f32 v21, v20, v22, v21")
        a(f"v_mul_f32 v23, {f32(24.0)}, v20")
        for kk in range(2):
            for i in range(4):
                a(f"v_cos_f32 v24, v21\nv_add_f32 v21, v21, v20\nv_cos_f32 v25, v21\nv_add_f32 v21, v21, v20\nv_cvt_pk_bf16_f32 v{68+4*kk+i}, v24, v25")
            if kk == 0: a("v_add_f32 v21, v21, v23")
        self.trig_setup(51, 1, 0, 16, 1.0 / 32)
        a("v_lshlrev_b32 v22, 2, v3\nv_cvt_f32_u32 v22, v22\nv_fma_f32 v21, v20, v22, v21")
        a(f"v_mul_f32 v23, {f32(12.0)}, v20")
        for i in range(4):
            a(f"v_cos_f32 v24, v21\nv_add_f32 v21, v21, v20\nv_cos_f32 v25, v21\nv_add_f32 v21, v21, v20\nv_cvt_pk_bf16_f32 v{76+i}, v24, v25")
            if i == 1: a("v_add_f32 v21, v21, v23")
        a("s_lshl_b32 s49, s51, 11\nv_xor_b32 v10, v2, v3\nv_lshlrev_b32 v10, 4, v10\nv_lshl_add_u32 v10, v3, 8, v10\nv_add_u32 v10, s49, v10\nv_xor_b32 v11, 64, v10\nv_add_u32 v11, 1024, v11")
        a(f"v_lshl_add_u32 v12, s51, 4, v2\nv_mul_u32_u24 v12, 1288, v12\nv_add_u32 v12, {L2}, v12")
        a("s_lshr_b32 s49, s50, 1\ns_mul_i32 s49, s49, 320\ns_and_b32 s52, s50, 1\ns_lshl_b32 s52, s52, 3\ns_add_u32 s49, s49, s52")
        a("v_lshrrev_b32 v13, 1, v3\nv_mul_u32_u24 v13, 640, v13\nv_and_b32 v14, 1, v3\nv_lshl_add_u32 v13, v14, 2, v13\nv_add3_u32 v13, v13, v12, s49")
        a("s_lshl_b32 s49, s50, 3\ns_sub_u32 s49, 36, s49\nv_lshlrev_b32 v14, 1, v3\nv_sub_u32 v14, s49, v14\nv_mul_u32_u24 v9, 57, v14\nv_lshrrev_b32 v9, 9, v9\nv_mul_u32_u24 v9, 9, v9\nv_sub_u32 v14, v14, v9")
        for e in range(9):
            a(f"v_add_u32 v9, {e}, v14\nv_subrev_u32 v15, 9, v9\nv_min_u32 v9, v9, v15\nv_lshl_add_u32 v{116+e}, v9, 5, v13")
        a(f"v_lshrrev_b32 v14, 2, v1\nv_mul_u32_u24 v14, 1288, v14\nv_and_b32 v9, 3, v1\nv_mul_u32_u24 v15, 320, v9\ns_lshl_b32 s49, s50, 4\ns_add_u32 s49, s49, {L2}\nv_add3_u32 v14, v14, v15, s49")
        a(f"v_lshrrev_b32 v15, 2, v2\nv_lshl_add_u32 v15, s51, 2, v15\nv_mul_u32_u24 v15, {19*16384}, v15\nv_lshl_add_u32 v15, v3, 6, v15\nv_lshl_add_u32 v15, v9, 4, v15")
        a(f"s_lshl_b32 s49, s50, 14\ns_lshl_b32 s52, s{S_J}, 8\ns_add_u32 s49, s49, s52\ns_add_u32 s49, s49, {VOFF}\nv_add_u32 v15, s49, v15")
        c = lambda k: math.cos(2 * math.pi * k / 9); s_ = lambda k: math.sin(2 * math.pi * k / 9)
        CN = {"c1": c(1), "c2": c(2), "c4": c(4), "s1": s_(1), "s2": s_(2), "s3": s_(3), "s4": s_(4), "mh": -0.5}
        CR = {}
        for i, (k, v) in enumerate(CN.items()):
            CR[k] = sr(60 + 2 * i, 2)
            a(f"s_mov_b32 s{60+2*i}, {f32(v)}\ns_mov_b32 s{61+2*i}, {f32(v)}")
        a("v_mov_b32 v9, 0xffff")
        a("s_waitcnt vmcnt(0)")
        self.stamp(1)
        for s in range(9):
            a(f"v_bfi_b32 v{50+2*s}, v9, v{32+2*s}, v{32+2*((s-1)%9)}\nv_bfi_b32 v{51+2*s}, v9, v{33+2*((s-2)%9)}, v{33+2*((s-3)%9)}")
            a(f"ds_write_b64 v{WA+s}, {vr(50+2*s,2)}")
        a("s_waitcnt lgkmcnt(0)\ns_barrier")
        order = [1, 8, 2, 7, 4, 5, 3, 6, 0]
        for i, b in enumerate(order):
            a(f"ds_read_b128 {vr(128+8*i,4)}, v10 offset:{4096*b}\nds_read_b128 {vr(132+8*i,4)}, v11 offset:{4096*b}")
        for i, b in enumerate(order):
            a(f"s_waitcnt lgkmcnt({min(15, 17-2*i)})")
            a(f"v_mfma_f32_16x16x32_bf16 {vr(80+4*b,4)}, v[68:71], {vr(128+8*i,4)}, 0")
            a(f"s_waitcnt lgkmcnt({min(15, 16-2*i)})")
            a(f"v_mfma_f32_16x16x32_bf16 {vr(80+4*b,4)}, v[72:75], {vr(132+8*i,4)}, {vr(80+4*b,4)}")
        self.stamp(2)
        def P(r): return vr(r, 2)
        add = lambda d, x, y: a(f"v_pk_add_f32 {P(d)}, {P(x)}, {P(y)}")
        sub = lambda d, x, y: a(f"v_pk_add_f32 {P(d)}, {P(x)}, {P(y)} neg_lo:[0,1] neg_hi:[0,1]")
        def fma(d, x, k, y, nk=False, ny=False):
            m = ""
            if nk or ny: m = f" neg_lo:[0,{int(nk)},{int(ny)}] neg_hi:[0,{int(nk)},{int(ny)}]"
            a(f"v_pk_fma_f32 {P(d)}, {P(x)}, {CR[k]}, {P(y)}{m}")
        ZR = [[0] * 9, [0] * 9]
        gens = []
        for h in range(2):
            g = lambda b, h=h: 80 + 4 * b + 2 * h
            T = 128 + 44 * h
            a1, a2, a3, a4, b1, b2, b3, b4, t, u, w, p, q, C0, C1, C2, C3, C4, S1, S2, S3, S4 = [T + 2 * i for i in range(22)]
            gens.append((g, (a1, a2, a3, a4, b1, b2, b3, b4, t, u, w, p, q, C0, C1, C2, C3, C4, S1, S2, S3, S4)))
        def both(fn):
            for h in range(2): fn(gens[h][0], *gens[h][1])
        both(lambda g, a1, a2, a3, a4, b1, b2, b3, b4, *r: (add(a1, g(1), g(8)), sub(b1, g(1), g(8))))
        both(lambda g, a1, a2, a3, a4, b1, b2, b3, b4, *r: (add(a2, g(2), g(7)), sub(b2, g(2), g(7))))
        both(lambda g, a1, a2, a3, a4, b1, b2, b3, b4, *r: (add(a4, g(4), g(5)), sub(b4, g(4), g(5))))
        both(lambda g, a1, a2, a3, a4, b1, b2, b3, b4, *r: (add(a3, g(3), g(6)), sub(b3, g(3), g(6))))
        def body(g, a1, a2, a3, a4, b1, b2, b3, b4, t, u, w, p, q, C0, C1, C2, C3, C4, S1, S2, S3, S4):
            add(t, a1, a2); sub(p, a1, a4); sub(q, a2, a4); add(t, t, a4); add(u, g(0), a3); fma(w, a3, "mh", g(0))
            add(C0, u, t); fma(C3, t, "mh", u)
            fma(C1, p, "c1", w); fma(C2, p, "c2", w); fma(C4, p, "c4", w)
            fma(C1, q, "c2", C1); fma(C2, q, "c4", C2); fma(C4, q, "c1", C4)
            sub(S3, b1, b2); add(p, b1, b2); add(q, b2, b4); a(f"v_pk_mul_f32 {P(b3)}, {P(b3)}, {CR['s3']}"); add(S3, S3, b4)
            fma(S1, p, "s1", b3); fma(S2, p, "s2", b3, ny=True); fma(S4, p, "s4", b3)
            a(f"v_pk_mul_f32 {P(S3)}, {P(S3)}, {CR['s3']}")
            fma(S1, q, "s4", S1); fma(S2, q, "s1", S2, nk=True); fma(S4, q, "s2", S4, nk=True)
        both(body)
        Ls = self.lab("Lsp")
        r0 = gens[0][1]; Cs = r0[13:18]; Ss = [None] + list(r0[18:22])
        a(f"s_cmp_lg_u32 s50, 0\ns_cbranch_scc1 {Ls}\ns_mov_b64 exec, 0xffff")
        for e in range(9):
            k = e if e <= 4 else 9 - e
            src = "0" if e == 0 else (f"v{Ss[k]+1}" if e <= 4 else f"-v{Ss[k]+1}")
            m = (e + 4) % 9
            off = (m >> 2) * 320 + (36 + ((m >> 1) & 1)) * 8 + (m & 1) * 4
            a(f"v_cvt_pk_bf16_f32 v{16+e}, v{Cs[k]+1}, {src}\nds_write_b32 v12, v{16+e} offset:{off}")
        for k in range(5): a(f"v_mov_b32 v{Cs[k]+1}, 0")
        for k in range(1, 5): a(f"v_mov_b32 v{Ss[k]+1}, 0")
        a(f"s_mov_b64 exec, -1\n{Ls}:")
        for h in range(2):
            r = gens[h][1]; C = r[13:18]; S = [None] + list(r[18:22])
            ZR[h][0] = C[0]
            for k in range(1, 5):
                ZR[h][k] = 80 + 4 * k + 2 * h; ZR[h][9 - k] = 80 + 4 * (9 - k) + 2 * h
        def combo(h, e):
            if e == 0: return
            r = gens[h][1]; C = r[13:18]; S = [None] + list(r[18:22])
            k = e if e <= 4 else 9 - e
            ng = "neg_lo:[0,1]" if e <= 4 else "neg_hi:[0,1]"
            a(f"v_pk_add_f32 {P(ZR[h][e])}, {P(C[k])}, {P(S[k])} op_sel:[0,1] op_sel_hi:[1,0] {ng}")
        for e in range(9):
            combo(0, e); combo(1, (e + 1) % 9)
            z0, z1 = ZR[0][e], ZR[1][(e + 1) % 9]
            a(f"v_cvt_pk_bf16_f32 v{32+2*e}, v{z0}, v{z1}\nv_cvt_pk_bf16_f32 v{33+2*e}, v{z0+1}, v{z1+1}")
            a(f"ds_write2_b32 v{116+e}, v{32+2*e}, v{33+2*e} offset0:0 offset1:4")
        a("s_waitcnt lgkmcnt(0)\ns_barrier")
        self.stamp(3)
        self.go_preload()
        for r in range(5):
            for T in range(2):
                for h2 in range(2):
                    a(f"ds_read_b64_tr_b16 {vr(128+8*r+4*T+2*h2,2)}, v14 offset:{64*r+8*T+20608*h2}")
        sc = "sc1" if self.mode == "fused" else ""
        Le = self.lab("Lse")
        for r in range(5):
            a(f"s_waitcnt lgkmcnt({min(15, 18-4*r)})")
            a(f"v_mfma_f32_16x16x32_bf16 {vr(176+8*r,4)}, {vr(128+8*r,4)}, v[76:79], 0")
            a(f"s_waitcnt lgkmcnt({min(15, 16-4*r)})")
            a(f"v_mfma_f32_16x16x32_bf16 {vr(180+8*r,4)}, {vr(132+8*r,4)}, v[76:79], 0")
        for r in range(5):
            if r == 4: a(f"s_cmp_eq_u32 s50, 3\ns_cbranch_scc1 {Le}")
            for i in range(4): a(f"v_cvt_pk_bf16_f32 v{32+4*r+i}, v{176+8*r+2*i}, v{177+8*r+2*i}")
            a(f"global_store_dwordx4 v15, {vr(32+4*r,4)}, {sr(WS,2)} {sc}")
            if r < 4: a("v_add_u32 v15, 0x10000, v15")
        a(f"{Le}:")
    def b_p2_setup(self):
        a = self.a
        a("v_and_b32 v2, 15, v1\nv_lshrrev_b32 v3, 4, v1")
        a(f"s_mul_i32 s50, s{S_J}, 57\ns_lshr_b32 s50, s50, 9\ns_mul_i32 s51, s50, 9\ns_sub_u32 s51, s{S_J}, s51")
        a(f"s_lshr_b32 s52, s{S_WAVE}, 2\ns_lshl_b32 s53, s50, 1\ns_add_u32 s53, s53, s52")
        a("s_and_b32 s54, s53, 15\ns_cmp_eq_u32 s54, 0\ns_cselect_b32 s54, 0, -1")
        a(f"s_and_b32 s49, s{S_WAVE}, 3\ns_lshl_b32 s49, s49, 9\ns_add_u32 s55, s49, s53")
        a(f"v_lshl_add_u32 v20, v2, 5, s55\nv_cvt_f32_u32 v20, v20\nv_mul_f32 v20, {f32(1.0/2048)}, v20\nv_lshlrev_b32 v22, 3, v3\nv_cvt_f32_u32 v22, v22\nv_mul_f32 v21, v20, v22\nv_mul_f32 v23, {f32(24.0)}, v20")
        for kk in range(2):
            for i in range(4):
                d = 4 * kk + i
                a(f"v_cos_f32 v24, v21\nv_sin_f32 v26, v21\nv_add_f32 v21, v21, v20\nv_cos_f32 v25, v21\nv_sin_f32 v27, v21\nv_add_f32 v21, v21, v20")
                a(f"v_cvt_pk_bf16_f32 v{64+d}, v24, v25\nv_cvt_pk_bf16_f32 v{80+d}, v26, v27\nv_cvt_pk_bf16_f32 v{72+d}, -v26, -v27")
                a(f"v_and_b32 v{88+d}, s54, v{64+d}\nv_and_b32 v{72+d}, s54, v{72+d}")
            if kk == 0: a("v_add_f32 v21, v21, v23")
        a(f"s_and_b32 s49, s50, 7\ns_mul_i32 s49, s49, 19\ns_lshl_b32 s60, s51, 1\ns_add_u32 s60, s60, s49\ns_lshl_b32 s60, s60, 14\ns_add_u32 s60, s60, {VOFF}")
        a("s_add_u32 s61, s60, 8192\ns_add_u32 s62, s60, 16384\ns_add_u32 s63, s60, 24576")
        a(f"s_add_u32 s49, s49, 18\ns_lshl_b32 s64, s49, 14\ns_add_u32 s64, s64, {VOFF}\ns_lshr_b32 s49, s51, 2\ns_lshl_b32 s49, s49, 6\ns_add_u32 s64, s64, s49\ns_and_b32 s49, s51, 3\ns_lshl_b32 s49, s49, 2\ns_add_u32 s64, s64, s49")
        a("v_lshlrev_b32 v4, 4, v0")
        a("v_bfe_u32 v9, v0, 2, 6\nv_and_b32 v10, 3, v0\nv_lshlrev_b32 v5, 8, v9\nv_lshl_add_u32 v5, v10, 4, v5")
        def rho(dst, src, tmp):
            a(f"v_and_b32 v{dst}, 35, v{src}\nv_bfe_u32 v{tmp}, v{src}, 2, 1\nv_lshl_add_u32 v{dst}, v{tmp}, 4, v{dst}\nv_bfe_u32 v{tmp}, v{src}, 3, 2\nv_lshl_add_u32 v{dst}, v{tmp}, 2, v{dst}")
        rho(7, 9, 11)
        a(f"v_mul_u32_u24 v7, 544, v7\nv_lshl_add_u32 v7, v10, 3, v7\nv_add_u32 v7, {L3+512}, v7")
        a("v_lshrrev_b32 v9, 4, v0")
        rho(6, 9, 11)
        a(f"v_mul_u32_u24 v6, 544, v6\nv_lshl_add_u32 v6, v10, 5, v6\nv_bfe_u32 v11, v0, 3, 1\nv_lshl_add_u32 v6, v11, 7, v6\nv_bfe_u32 v11, v0, 2, 1\nv_lshl_add_u32 v6, v11, 4, v6\nv_add_u32 v6, {L3}, v6")
        a("s_lshl_b32 s49, s52, 1\ns_cmp_eq_u32 s53, 16\ns_cselect_b32 s49, 1, s49\ns_lshl_b32 s65, s49, 5\ns_lshl_b32 s49, s49, 3")
        a(f"v_lshrrev_b32 v9, 2, v1\nv_mul_u32_u24 v9, 544, v9\nv_add_u32 v9, {L3}, v9\nv_and_b32 v10, 3, v1\nv_lshl_add_u32 v8, v10, 3, v9\nv_add_u32 v8, s65, v8")
        a("v_add_u32 v9, s49, v9\nv_cmp_eq_u32 vcc, 3, v10")
        for comp in range(2):
            for cs in range(2):
                a(f"v_add_u32 v11, {8+256*comp+32*cs}, v8\nv_add_u32 v28, {512+8*cs}, v9\nv_cndmask_b32 v{16+2*comp+cs}, v11, v28, vcc")
        a(f"s_lshl_b32 s49, s{S_WAVE}, 12\nv_lshrrev_b32 v11, 1, v2\nv_add_u32 v11, v11, v3\nv_and_b32 v11, 3, v11\nv_lshlrev_b32 v11, 4, v11\nv_lshl_add_u32 v20, v2, 6, v11\nv_add_u32 v20, s49, v20")
        a("v_lshrrev_b32 v9, 2, v1\nv_lshrrev_b32 v11, 3, v1\nv_add_u32 v21, v11, v10\nv_and_b32 v21, 3, v21\nv_sub_u32 v22, v11, v10\nv_add_u32 v22, 3, v22\nv_and_b32 v22, 3, v22")
        a("v_lshlrev_b32 v11, 6, v9\nv_add_u32 v11, s49, v11\nv_lshl_add_u32 v21, v21, 4, v11\nv_lshl_add_u32 v22, v22, 4, v11")
        a(f"v_lshl_add_u32 v9, v9, 5, s55\nv_sub_u32 v11, 2048, v9\nv_and_b32 v11, 2047, v11\nv_lshlrev_b32 v10, 4, v10\nv_add_u32 v10, 1152, v10\nv_mad_u32_u24 v23, v9, s68, v10\nv_mad_u32_u24 v24, v11, s68, v10".replace("v_lshl_add_u32 v9, v9, 5, s55", "s_movk_i32 s68, 2304\nv_lshl_add_u32 v9, v9, 5, s55"))
        a("s_lshl_b32 s66, s51, 7\ns_sub_u32 s67, 1088, s66\nv_add_u32 v25, s67, v23\nv_add_u32 v26, s67, v24\nv_add_u32 v23, s66, v23\nv_add_u32 v24, s66, v24")
    def b_p2(self, endlab):
        a = self.a
        sc = "sc1" if self.mode == "fused" else ""
        for i in range(4):
            a(f"buffer_load_dwordx4 {vr(96+4*i,4)}, v4, {sr(SRD_WS,4)}, s{60+i} offen {sc}")
        a(f"buffer_load_dword v112, v5, {sr(SRD_WS,4)}, s64 offen {sc}")
        for i in range(4):
            a(f"s_waitcnt vmcnt({4-i})\nds_write_b128 v6, {vr(96+4*i,4)} offset:{(i&1)*17408+(i>>1)*256}")
        a("s_waitcnt vmcnt(0)\nds_write_b32 v7, v112\ns_waitcnt lgkmcnt(0)\ns_barrier")
        self.stamp(5)
        a(f"s_cmp_eq_u32 s53, 17\ns_cbranch_scc1 {endlab}")
        M = {(0, 0): 64, (0, 1): 72, (1, 0): 80, (1, 1): 88}
        ACC = {(0, 0): 32, (0, 1): 36, (0, 2): 40, (1, 0): 44, (1, 1): 48, (1, 2): 52}
        jobs = [(comp, cs, kk, T) for kk in range(2) for cs in range(2) for comp in range(2) for T in range(3)]
        D = 7
        def rd(i):
            comp, cs, kk, T = jobs[i]
            for h in range(2):
                if T < 2: a(f"ds_read_b64_tr_b16 {vr(128+4*i+2*h,2)}, v8 offset:{kk*17408+h*8704+comp*256+T*128+cs*32}")
                else: a(f"ds_read_b64_tr_b16 {vr(128+4*i+2*h,2)}, v{16+2*comp+cs} offset:{kk*17408+h*8704}")
        for i in range(D): rd(i)
        first = set()
        for i, (comp, cs, kk, T) in enumerate(jobs):
            rem = min(len(jobs), i + D) - i - 1
            a(f"s_waitcnt lgkmcnt({2*rem})")
            c = ACC[(comp, T)]
            src = vr(c, 4) if (comp, T) in first else "0"
            first.add((comp, T))
            a(f"v_mfma_f32_16x16x32_bf16 {vr(c,4)}, {vr(128+4*i,4)}, {vr(M[(comp,cs)]+4*kk,4)}, {src}")
            if i + D < len(jobs): rd(i + D)
        a("v_cmp_eq_u32 vcc, 3, v3\nv_cndmask_b32 v52, v52, v53, vcc")
        for i in range(0, 8, 2):
            a(f"v_pk_add_f32 {vr(96+i,2)}, {vr(32+i,2)}, {vr(44+i,2)} neg_lo:[0,1] neg_hi:[0,1]\nv_pk_add_f32 {vr(106+i,2)}, {vr(32+i,2)}, {vr(44+i,2)}")
        a("v_sub_f32 v104, v40, v52\nv_add_f32 v114, v40, v52")
        Dm, Dp = 96, 106
        for x, (b, rev) in enumerate(((Dm, 0), (Dp, 1), (Dp, 0), (Dm, 1))):
            for i in range(4):
                if rev: a(f"v_cvt_pk_bf16_f32 v{128+4*x+i}, v{b+8-2*i}, v{b+7-2*i}")
                else: a(f"v_cvt_pk_bf16_f32 v{128+4*x+i}, v{b+2*i}, v{b+2*i+1}")
            a(f"ds_write_b128 v20, {vr(128+4*x,4)} offset:{L4+1024*x}")
        a("s_waitcnt lgkmcnt(0)")
        for x in range(4):
            a(f"ds_read_b128 {vr(144+4*x,4)}, v{21+(x&1)} offset:{L4+1024*x}")
        so = self.opt.get("b_out", "")
        ad = (23, 25, 24, 26)
        for x in range(4):
            if x == 2: a(f"s_cmp_eq_u32 s54, 0\ns_cbranch_scc1 {endlab}")
            a(f"s_waitcnt lgkmcnt({3-x})\nglobal_store_dwordx4 v{ad[x]}, {vr(144+4*x,4)}, {sr(OUT,2)} {so}")

    def dispatch(self, LA, LB1, LB2):
        a = self.a
        a(f"s_add_u32 s{S_J}, s48, 64\ns_cmp_eq_u32 s3, 0\ns_cbranch_scc1 {LB2}")
        a(f"s_sub_u32 s{S_J}, s2, 144\ns_cmp_ge_u32 s3, 27\ns_cbranch_scc1 {LB2}")
        a(f"s_sub_u32 s{S_J}, s2, 152\ns_cmp_ge_u32 s3, 19\ns_cbranch_scc1 {LB1}")
        a(f"s_mul_i32 s{S_J}, s48, 18\ns_add_u32 s{S_J}, s{S_J}, s3\ns_sub_u32 s{S_J}, s{S_J}, 1")
    def kd(self, kname):
        self.a(f""".section .rodata,"a"
.p2align 6
.amdhsa_kernel {kname}
.amdhsa_next_free_vgpr 256
.amdhsa_next_free_sgpr 102
.amdhsa_accum_offset 256
.amdhsa_group_segment_fixed_size 0
.amdhsa_kernarg_size 112
.amdhsa_user_sgpr_count 2
.amdhsa_user_sgpr_kernarg_segment_ptr 1
.amdhsa_system_sgpr_workgroup_id_x 1
.amdhsa_float_denorm_mode_32 3
.end_amdhsa_kernel
.text""")
    def a_p2_all(self, fin, fused):
        a = self.a
        LQ = self.lab("LAq"); LE = self.lab("LAe")
        self.a_hprep_finish()
        a(f"s_bitcmp1_b32 s{S_J}, 0\ns_cbranch_scc1 {LQ}")
        for part in range(2):
            if part: a(f"{LQ}:")
            self.a_resident(part)
            self.a_p2_addr(part)
            a("s_waitcnt lgkmcnt(0)")
            self.stamp(3)
            if fused:
                a(f"v_mov_b32 v120, v13\ns_and_b32 s48, s{S_J}, -16")
                self.poll(48, 16, False)
                a("v_mov_b32 v13, v120")
            else:
                a("s_barrier")
            self.stamp(4)
            self.a_kv_load(part)
            self.stamp(5)
            self.a_conv(part)
            if part == 0: a(f"s_branch {LE}")
        a(f"{LE}:\ns_nop 7")
        self.stamp(6)
        self.a_epilogue()
        a(f"s_branch {fin}")
    def build(self):
        a = self.a
        hdr = open("cdna_kernels/" + NAME + ".s.ref").read().split("\n")
        head = [l for l in hdr if l.startswith(";") and "@launch" not in l and "Override" not in l and "grid=ceil" not in l][:15]
        cb = self.opt.get("codebytes", 16384)
        if self.mode == "two":
            head += [f"; @launch kernel=p1_kernel grid=({NWG},1,1) block=(512,1,1) lds={LDS_BYTES}", f"; @launch kernel=p2_kernel grid=({NWG},1,1) block=(512,1,1) lds={LDS_BYTES}"]
            a('.amdgcn_target "amdgcn-amd-amdhsa--gfx950"\n.text')
            self.prologue("p1_kernel", "L1_end", 4096)
            self.dispatch("x", "L1_b1", "L1_fin")
            self.a_p1_loads(); self.a_p1_compute(0); a("s_branch L1_fin")
            a("L1_b1:"); self.b_p1()
            a("L1_fin:\ns_waitcnt lgkmcnt(0)"); self.dump_stamps(0)
            a("L1_end:\ns_endpgm"); self.kd("p1_kernel")
            self.prologue("p2_kernel", "L2_end", 12288)
            self.dispatch("x", "L2_b2", "L2_b2")
            self.ptr_wait(); self.a_h_loads(); self.a_hprep_setup()
            for p in range(4):
                a(f"s_waitcnt vmcnt({9-3*p})"); self.a_hprep_pass(p)
            self.a_p2_all("L2_fin", False)
            a("L2_b2:"); self.ptr_wait(); self.b_p2_setup(); self.b_p2("L2_fin")
            a("L2_fin:"); self.dump_stamps(1)
            a("L2_end:\ns_endpgm\n.fill 4096, 4, 0xbf800000"); self.kd("p2_kernel")
        else:
            kn = NAME + "_kernel"
            head += [f"; @launch grid=({NWG},1,1) block=(512,1,1) lds={LDS_BYTES}"]
            a('.amdgcn_target "amdgcn-amd-amdhsa--gfx950"\n.text')
            self.prologue(kn, "L_end", cb)
            self.dispatch("x", "L_b1", "L_b2")
            self.a_p1_loads(); nh = self.a_h_loads(); self.a_hprep_setup()
            self.a_p1_compute(nh)
            self.stamp(1)
            npre = self.opt.get("npre", 3)
            for p in range(npre):
                a(f"s_waitcnt vmcnt({9-3*p+3})"); self.a_hprep_pass(p)
            a("s_waitcnt vmcnt(0)")
            self.publish(S_J)
            self.stamp(2)
            for p in range(npre, 4): self.a_hprep_pass(p)
            self.a_p2_all("L_fin", True)
            a("L_b1:"); self.b_p1()
            a(f"s_waitcnt vmcnt(0)\ns_add_u32 s48, s{S_J}, 144")
            self.publish(48)
            a("s_branch L_b2go")
            a("L_b2:"); self.ptr_wait()
            a(f"s_cmp_lg_u32 s2, 0\ns_cbranch_scc1 L_b2w\nv_min_u32 v12, 207, v0\nv_lshlrev_b32 v12, 7, v12\nv_add_u32 v12, {FLAGOFF}, v12\nv_mov_b32 v13, 0")
            a(f"global_store_dword v12, v13, {sr(WS,2)} sc0 sc1\ns_waitcnt vmcnt(0)\ns_barrier\nv_mov_b32 v12, 1\ns_cmp_lg_u32 s{S_WAVE}, 0\ns_cbranch_scc1 L_b2go\ns_mov_b64 exec, 1")
            a(f"global_store_dword v13, v12, {sr(DBG,2)} sc0 sc1\ns_mov_b64 exec, -1\ns_branch L_b2go")
            a(f"L_b2w:\ns_cmp_lg_u32 s{S_WAVE}, 0\ns_cbranch_scc1 L_b2go")
            self.wait_go()
            a("L_b2go:")
            self.b_p2_setup()
            a("s_movk_i32 s48, 144")
            self.poll(48, 64, False)
            self.stamp(4)
            self.b_p2("L_fin")
            a("L_fin:"); self.dump_stamps(0)
            if self.opt.get("amp") is not None:
                a("s_waitcnt vmcnt(0)")
                self.stamp(7)
                r = self.opt.get("amprole", "A")
                a("s_lshr_b32 s3, s2, 3\ns_sub_u32 s3, s3, 1\ns_cmp_lt_u32 s3, 18\n" + ("s_cbranch_scc0 L_end" if r == "A" else "s_cbranch_scc1 L_end"))
                if r != "A": a("s_cmp_lt_u32 s3, 26\ns_cbranch_scc0 L_end")
                a("s_sub_u32 s98, s98, s96\ns_lshl_b32 s98, s98, 3\ns_min_u32 s98, s98, 100000\ns_memrealtime s[96:97]\ns_waitcnt lgkmcnt(0)\ns_mov_b32 s99, s96")
                a("L_amp:\ns_memrealtime s[96:97]\ns_waitcnt lgkmcnt(0)\ns_sub_u32 s96, s96, s99\ns_cmp_lt_u32 s96, s98\ns_cbranch_scc1 L_amp")
            a("L_end:\ns_endpgm\n.fill 1024, 4, 0xbf800000"); self.kd(kn)
        return "\n".join(head) + "\n" + a.text()

if __name__ == "__main__":
    import argparse
    ap = argparse.ArgumentParser()
    ap.add_argument("--mode", default="fused"); ap.add_argument("--stamps", action="store_true"); ap.add_argument("-o", default="/dev/stdout")
    ap.add_argument("--opt", nargs="*", default=[])
    args = ap.parse_args()
    opt = {}
    for o in args.opt:
        k, v = o.split("=", 1)
        opt[k] = int(v) if v.lstrip("-").isdigit() else v
    open(args.o, "w").write(G(args.mode, args.stamps, opt).build())
```

```python
import sys, math, struct
from asmlib import Asm, vr, sr

NAME = "concat_heads__ssm_conv_h3__spectral_fnet__prompt"
NWG = 225
KVOFF = 0
VOFF = 0x240000
FLAGOFF = 0x500000
STAMPOFF = 0x600000
WSBYTES = 268435456
CS = 16944
KVL = 12288
L1, L2, L3, L4 = 0, 36864, 78080, 0
LCNT = 8 * CS
LDS_BYTES = 8 * CS + 16

def f32(x): return "0x%08x" % struct.unpack("<I", struct.pack("<f", x))[0]

S_WAVE, S_J = 6, 7
Q, K, V, SH, H, DD, X, OUT, DBG, WS = 8, 10, 12, 14, 16, 18, 20, 30, 32, 34
SRD_K, SRD_V, SRD_H, SRD_WS = 36, 40, 44, 56

class G:
    def __init__(self, mode="fused", stamps=False, opt=None):
        self.a = Asm(); self.mode = mode; self.stamps = stamps; self.opt = opt or {}
        self.nlab = 0
        self.clk = "s_memtime" if self.opt.get("cyc") else "s_memrealtime"
    def lab(self, p="L"):
        self.nlab += 1; return f"{p}_{self.nlab}"
    def stamp(self, i):
        if self.opt.get("amp") == i:
            self.a("s_memrealtime s[98:99]\ns_waitcnt lgkmcnt(0)")
        if self.stamps:
            self.a(f"{self.clk} s[{80+2*i}:{81+2*i}]\ns_waitcnt lgkmcnt(0)")
    def dump_stamps(self, slot):
        a = self.a
        if not self.stamps: return
        L = self.lab("Lst")
        a("s_waitcnt vmcnt(0)")
        self.stamp(7)
        for i in range(8): a(f"v_mov_b32 v{2+i}, s{80+2*i}")
        a(f"s_lshl_b32 s3, s2, 3\ns_add_u32 s3, s3, s{S_WAVE}\ns_lshl_b32 s3, s3, 5\ns_add_u32 s3, s3, {STAMPOFF + slot*65536}\nv_mov_b32 v10, s3\ns_mov_b64 exec, 1")
        a(f"global_store_dwordx4 v10, v[2:5], {sr(WS,2)}\nglobal_store_dwordx4 v10, v[6:9], {sr(WS,2)} offset:16")
        a(f"{L}:")

    def prologue(self, kname, endlab, codebytes):
        a = self.a
        a(f".globl {kname}\n.p2align 8\n.type {kname},@function\n{kname}:")
        a(f"s_load_dwordx16 s[8:23], s[0:1], 0\ns_load_dwordx8 s[24:31], s[0:1], 64\ns_load_dwordx4 s[32:35], s[0:1], 96")
        if self.stamps:
            for i in range(8): a(f"s_mov_b32 s{80+2*i}, 0")
            a(f"{self.clk} s[80:81]")
        if self.opt.get("amp") is not None: a("s_memrealtime s[96:97]")
        a(f"s_cmp_ge_u32 s2, {NWG}\ns_cbranch_scc1 {endlab}")
        if not self.opt.get("nopf"): a(f"s_getpc_b64 s[4:5]\nv_lshlrev_b32 v2, 7, v0\nv_min_u32 v2, {codebytes}, v2\nglobal_load_dword v255, v2, s[4:5]")
        a(f"v_lshrrev_b32 v2, 6, v0\nv_and_b32 v1, 63, v0\nv_readfirstlane_b32 s{S_WAVE}, v2")
        a(f"s_mov_b32 s{SRD_K+2}, 2359296\ns_mov_b32 s{SRD_K+3}, 0x20000\ns_mov_b32 s{SRD_V+2}, 2359296\ns_mov_b32 s{SRD_V+3}, 0x20000")
        a(f"s_mov_b32 s{SRD_H+2}, 2359296\ns_mov_b32 s{SRD_H+3}, 0x20000\ns_mov_b32 s{SRD_WS+2}, {WSBYTES}\ns_mov_b32 s{SRD_WS+3}, 0x20000")
        a("s_lshr_b32 s3, s2, 3\ns_and_b32 s48, s2, 7")
    def ptr_wait(self):
        a = self.a
        a("s_waitcnt lgkmcnt(0)")
        a(f"s_mov_b64 {sr(SRD_K,2)}, {sr(K,2)}\ns_mov_b64 {sr(SRD_V,2)}, {sr(V,2)}\ns_mov_b64 {sr(SRD_H,2)}, {sr(H,2)}\ns_mov_b64 {sr(SRD_WS,2)}, {sr(WS,2)}")

    def go_preload(self):
        if self.mode == "fused":
            self.a(f"v_mov_b32 v126, 0\nglobal_load_dword v127, v126, {sr(DBG,2)} sc0 sc1")
    def wait_go(self, pre=False):
        a = self.a; L = self.lab("Lgo"); E = self.lab("Lgox")
        if pre: a(f"v_cmp_eq_u32 vcc, 0, v127\ns_cbranch_vccz {E}")
        a(f"v_mov_b32 v126, 0\ns_mov_b32 s49, 0\n{L}:\nglobal_load_dword v127, v126, {sr(DBG,2)} sc0 sc1\ns_waitcnt vmcnt(0)")
        a(f"v_cmp_eq_u32 vcc, 0, v127\ns_add_u32 s49, s49, 1\ns_cmp_gt_u32 s49, 0x100000\ns_cbranch_scc1 {E}\ns_cbranch_vccnz {L}\n{E}:")
    def cnt_init(self):
        self.a(f"v_mov_b32 v126, {LCNT}\nv_mov_b32 v127, 0\nds_write_b32 v126, v127")
    def publish(self, sflag):
        a = self.a; L = self.lab("Lpub")
        self.wait_go(True)
        a(f"v_mov_b32 v126, {LCNT}\nv_mov_b32 v127, 1\ns_mov_b64 exec, 1\nds_add_rtn_u32 v126, v126, v127")
        a(f"s_lshl_b32 s49, s{sflag}, 7\ns_add_u32 s49, s49, {FLAGOFF}\ns_waitcnt lgkmcnt(0)\nv_cmp_eq_u32 vcc, 7, v126\nv_mov_b32 v126, s49\ns_cbranch_vccz {L}")
        a(f"global_store_dword v126, v127, {sr(WS,2)} sc0 sc1\n{L}:\ns_mov_b64 exec, -1")
    def poll(self, sfirst, nflags, need_go):
        a = self.a; L = self.lab("Lpoll"); E = self.lab("Lpollx")
        a(f"s_cmp_lg_u32 s{S_WAVE}, 0\ns_cbranch_scc1 {E}")
        if need_go: self.wait_go()
        a(f"v_and_b32 v12, {nflags-1}, v1\nv_add_u32 v12, s{sfirst}, v12\nv_lshlrev_b32 v12, 7, v12\nv_add_u32 v12, {FLAGOFF}, v12\ns_mov_b32 s49, 0")
        a(f"{L}:\nglobal_load_dword v13, v12, {sr(WS,2)} sc0 sc1\ns_waitcnt vmcnt(0)")
        a(f"v_cmp_ne_u32 vcc, 1, v13\ns_add_u32 s49, s49, 1\ns_cmp_gt_u32 s49, 0x100000\ns_cbranch_scc1 {E}\ns_cbranch_vccnz {L}\n{E}:\ns_barrier")

    def a_p1_loads(self):
        a = self.a
        nt = self.opt.get("kv_nt", "nt")
        a(f"s_lshr_b32 s48, s{S_J}, 4\ns_and_b32 s49, s{S_J}, 15\ns_lshl_b32 s50, s49, 3\ns_add_u32 s50, s50, s{S_WAVE}")
        a(f"s_mul_i32 s51, s50, {16*1152}\ns_lshl_b32 s52, s48, 7\ns_add_u32 s51, s51, s52\ns_movk_i32 s54, 4608")
        a("v_lshrrev_b32 v2, 5, v1\nv_and_b32 v7, 31, v1\nv_mul_u32_u24 v4, 9216, v2\nv_lshl_add_u32 v4, v7, 2, v4\nv_add_u32 v4, s51, v4\nv_add_u32 v5, 0xfffff280, v4")
        a("s_lshl_b32 s52, s48, 9\nv_lshlrev_b32 v6, 4, v7\nv_add_u32 v6, s52, v6")
        self.ptr_wait()
        a(f"global_load_dwordx4 v[128:131], v6, {sr(SH,2)}")
        for i in range(3):
            a(f"buffer_load_dword v{132+i}, v5, {sr(SRD_K,4)}, 0 offen offset:{1152*i} {nt}")
        for t in range(8):
            so = "0" if t < 4 else "s54"
            a(f"buffer_load_dword v{135+t}, v4, {sr(SRD_K,4)}, {so} offen offset:{1152*(t&3)} {nt}")
            a(f"buffer_load_dword v{143+t}, v4, {sr(SRD_V,4)}, {so} offen offset:{1152*(t&3)} {nt}")
        a(f"s_lshl_b32 s52, s48, 18\ns_lshl_b32 s50, s50, 8\ns_add_u32 s52, s52, s50\nv_lshrrev_b32 v6, 2, v7\nv_lshlrev_b32 v6, 15, v6")
        a("v_and_b32 v7, 3, v7\nv_lshlrev_b32 v7, 4, v7\nv_lshl_add_u32 v7, v2, 6, v7\nv_add3_u32 v120, v6, v7, s52")
    def a_h_addr(self):
        a = self.a
        a(f"s_lshr_b32 s50, s{S_J}, 1\ns_lshl_b32 s50, s50, 3\ns_add_u32 s50, s50, s{S_WAVE}")
        a(f"s_lshl_b32 s51, s50, 12\nv_lshlrev_b32 v122, 4, v1\nv_and_b32 v123, 48, v122")
        a(f"s_and_b32 s52, s50, -2\ns_lshl_b32 s52, s52, 1\ns_load_dword s53, {sr(DD,2)}, s52")
    def a_h_loads(self):
        a = self.a
        a(f"buffer_load_dwordx4 v[80:83], v123, {sr(SRD_H,4)}, s51 offen")
        for p in range(4):
            a(f"buffer_load_dwordx4 {vr(32+6*p,4)}, v122, {sr(SRD_H,4)}, s51 offen offset:{32+1024*p}")
            a(f"buffer_load_dwordx2 {vr(36+6*p,2)}, v122, {sr(SRD_H,4)}, s51 offen offset:{48+1024*p}")
        return 9
    def a_setup(self):
        a = self.a
        a(f"s_mul_i32 s55, s{S_WAVE}, {CS}")
        a("v_lshrrev_b32 v11, 2, v1\nv_lshlrev_b32 v121, 8, v11\nv_add3_u32 v121, v121, v123, s55\nv_and_b32 v11, 1, v11\nv_lshlrev_b32 v11, 6, v11\nv_sub_u32 v119, v121, v11\nv_add_u32 v121, v121, v11")
        a(f"v_min_u32 v11, {29*16}, v122\nv_add_u32 v11, s55, v11")
        for i in range(16, 32): a(f"v_mov_b32 v{i}, 0")
        a(f"ds_write_b128 v11, v[16:19] offset:{KVL+4096}")
        a("v_add_u32 v118, s55, v123")
        a("v_and_b32 v2, 15, v1\nv_lshrrev_b32 v3, 4, v1")
        a("v_lshrrev_b32 v4, 2, v2\nv_lshl_add_u32 v4, v3, 1, v4\nv_add_u32 v5, 1, v4\nv_and_b32 v11, 3, v2")
        for r in (4, 5):
            a(f"v_lshrrev_b32 v12, 3, v{r}\nv_and_b32 v{r}, 7, v{r}\nv_lshlrev_b32 v{r}, 3, v{r}\nv_lshl_add_u32 v{r}, v12, 8, v{r}\nv_xor_b32 v12, v12, v11\nv_lshl_add_u32 v{r}, v12, 6, v{r}\nv_xor_b32 v{80+r}, 64, v{r}\nv_add_u32 v{r}, s55, v{r}\nv_add_u32 v{80+r}, s55, v{80+r}")
        a(f"v_sub_u32 v6, 15, v2\nv_lshlrev_b32 v6, 5, v6\nv_lshl_add_u32 v6, v3, 4, v6\nv_add_u32 v6, s55, v6\nv_add_u32 v6, {KVL}, v6")
        a(f"v_lshl_add_u32 v11, v3, 3, v2\nv_lshlrev_b32 v124, 1, v11\nv_add_u32 v124, s55, v124")
        a("s_waitcnt lgkmcnt(0)\ns_bitcmp1_b32 s50, 0\ns_cselect_b32 s52, 16, 0\ns_lshr_b32 s53, s53, s52\ns_and_b32 s53, s53, 0xffff")
        a("v_sub_u32 v11, 15, v11\nv_and_b32 v12, 1, v11\nv_lshlrev_b32 v12, 4, v12\nv_lshlrev_b32 v12, v12, s53\nv_ashrrev_i32 v11, 1, v11")
        for i in range(4):
            a(f"v_cmp_eq_u32 vcc, {i}, v11\nv_cndmask_b32 v{92+i}, 0, v12, vcc")
        a(f"s_lshr_b32 s48, s{S_J}, 1\ns_lshl_b32 s60, s48, 15\ns_add_u32 s61, s60, 8192\ns_add_u32 s62, s60, 16384\ns_add_u32 s63, s60, 24576\nv_lshlrev_b32 v7, 4, v0")
        a(f"v_and_b32 v11, 3, v0\nv_bfe_u32 v12, v0, 3, 1\nv_lshl_add_u32 v11, v11, 1, v12\nv_mul_u32_u24 v13, {CS}, v11")
        a(f"v_lshrrev_b32 v11, 4, v0\nv_bfe_u32 v12, v0, 2, 1\nv_lshl_add_u32 v11, v11, 1, v12\nv_sub_u32 v11, 63, v11\nv_lshl_add_u32 v13, v11, 4, v13\nv_add_u32 v13, {KVL}, v13")
        a(f"s_lshr_b32 s49, s{S_WAVE}, 1\ns_cmp_ge_u32 s49, 2\ns_cselect_b32 s64, 4, 0\ns_bitcmp1_b32 s{S_J}, 0\ns_cselect_b32 s64, 2, s64\ns_add_u32 s64, s64, s49")
        a(f"s_lshl_b32 s64, s64, 1\ns_and_b32 s52, s{S_WAVE}, 1\ns_add_u32 s64, s64, s52\ns_lshl_b32 s64, s64, 7\nv_add_u32 v11, s64, v1")
        a("s_lshl_b32 s48, s48, 4\nv_mul_u32_u24 v14, 1152, v11\nv_add_u32 v14, s48, v14\nv_mul_u32_u24 v15, 2304, v11\nv_add_u32 v15, s48, v15")
        a("v_mul_u32_u24 v8, 192, v3\nv_lshl_add_u32 v8, v2, 3, v8\nv_add_u32 v8, s55, v8")
        a(f"v_bfe_u32 v11, v1, 2, 2\nv_mul_u32_u24 v9, {CS}, v11\nv_and_b32 v11, 3, v1\nv_mul_u32_u24 v11, 192, v11\nv_lshl_add_u32 v11, v3, 3, v11")
        a(f"s_mul_i32 s49, s49, 768\ns_lshl_b32 s52, s52, 6\ns_add_u32 s49, s49, s52\nv_add3_u32 v9, v9, v11, s49\nv_add_u32 v10, {4*CS}, v9")
        a(f"s_and_b32 s48, s{S_J}, -16\nv_add_u32 v125, s48, v2\nv_lshlrev_b32 v125, 7, v125\nv_add_u32 v125, {FLAGOFF}, v125")
    def a_p1_compute(self, nh, hpos):
        a = self.a
        W, KF, VF, U, O = 152, 160, 182, 184, 200
        def unpack(dst, src):
            a(f"v_lshlrev_b32 v{dst}, 16, v{src}\nv_and_b32 v{dst+1}, 0xffff0000, v{src}")
        a(f"s_waitcnt vmcnt({16+nh})")
        if hpos == -1: nh += self.a_h_loads()
        a(f"v_lshlrev_b32 v{W}, 16, v128\nv_lshlrev_b32 v{W+1}, 16, v130\nv_and_b32 v{W+2}, 0xffff0000, v128\nv_and_b32 v{W+3}, 0xffff0000, v130")
        a(f"v_lshlrev_b32 v{W+4}, 16, v129\nv_lshlrev_b32 v{W+5}, 16, v131\nv_and_b32 v{W+6}, 0xffff0000, v129\nv_and_b32 v{W+7}, 0xffff0000, v131")
        for i in range(3): unpack(KF + 2 * i, 132 + i)
        for t in range(8):
            u = U + 2 * t
            a(f"v_pk_mul_f32 {vr(u,2)}, {vr(W+6,2)}, {vr(KF+2*t,2)}")
            a(f"v_pk_fma_f32 {vr(u,2)}, {vr(W+4,2)}, {vr(KF+2*t+2,2)}, {vr(u,2)}")
            a(f"v_pk_fma_f32 {vr(u,2)}, {vr(W+2,2)}, {vr(KF+2*t+4,2)}, {vr(u,2)}")
            a(f"s_waitcnt vmcnt({2*(7-t)+nh})")
            if hpos == t: nh += self.a_h_loads()
            unpack(KF + 2 * t + 6, 135 + t)
            unpack(VF, 143 + t)
            a(f"v_pk_fma_f32 {vr(u,2)}, {vr(W,2)}, {vr(KF+2*t+6,2)}, {vr(u,2)}")
            a(f"v_pk_mul_f32 {vr(u,2)}, {vr(u,2)}, {vr(VF,2)}")
            if t & 1:
                d = 3 - (t >> 1)
                a(f"v_cvt_pk_bf16_f32 v{O+d}, v{u}, v{u-2}\nv_cvt_pk_bf16_f32 v{O+4+d}, v{u+1}, v{u-1}")
        a(f"global_store_dwordx4 v120, {vr(O,4)}, {sr(WS,2)} sc1\nglobal_store_dwordx4 v120, {vr(O+4,4)}, {sr(WS,2)} offset:128 sc1")
        self.go_preload()
    def a_hprep_pass(self, p):
        a = self.a
        w = 32 + 6 * p
        T = 56 + 12 * (p & 1)
        if p == 0: a(f"ds_write_b128 v118, v[80:83] offset:{KVL+4576}")
        a(f"ds_write_b128 v119, {vr(w+2,4)} offset:{4096*p+192}")
        for i in range(4): a(f"v_mov_b32 v{T+i}, v{w+1+i}")
        a(f"ds_write_b128 v119, {vr(T,4)} offset:{4096*p+64}")
        for i in range(4): a(f"v_alignbit_b32 v{T+4+i}, v{w+i+1}, v{w+i}, 16")
        a(f"ds_write_b128 v121, {vr(T+4,4)} offset:{4096*p}")
        for i in range(3): a(f"v_mov_b32 v{T+8+i}, v{T+5+i}")
        a(f"v_alignbit_b32 v{T+11}, v{w+5}, v{w+4}, 16")
        a(f"ds_write_b128 v121, {vr(T+8,4)} offset:{4096*p+128}")
    def a_read_tile(self, dst, n):
        r = 4 if (n - 1) % 2 == 0 else 84
        self.a(f"ds_read_b64 {vr(dst,2)}, v{r} offset:{(n-1)*256}\nds_read_b64 {vr(dst+2,2)}, v{r+1} offset:{(n-1)*256}")
    def a_resident(self, js):
        for j in js:
            for rho in range(8):
                self.a_read_tile(128 + 32 * (j - 4) + 4 * rho, 8 * j + rho)
    def wave_poll(self, vaddr, between):
        a = self.a; L = self.lab("Lp"); E = self.lab("Lpx"); C = self.lab("Lpc")
        a(f"global_load_dword v127, v{vaddr}, {sr(WS,2)} sc0 sc1")
        between()
        a(f"s_mov_b32 s49, 0\ns_branch {C}\n{L}:\nglobal_load_dword v127, v{vaddr}, {sr(WS,2)} sc0 sc1\n{C}:\ns_add_u32 s49, s49, 1\ns_cmp_gt_u32 s49, 0x100000\ns_waitcnt vmcnt(0)")
        a(f"v_cmp_ne_u32 vcc, 1, v127\ns_cbranch_scc1 {E}\ns_cbranch_vccnz {L}\n{E}:")
    def a_kv_load(self, part, between):
        a = self.a
        n = 4 if part == 0 else 3
        for i in range(n):
            a(f"buffer_load_dwordx4 {vr(100+4*i,4)}, v7, {sr(SRD_WS,4)}, s{60+i} offen sc1")
        if part == 0: a("s_waitcnt lgkmcnt(0)\ns_barrier")
        between()
        for i in range(n):
            a(f"s_waitcnt vmcnt({n-1-i})\nds_write_b128 v13, {vr(100+4*i,4)} offset:{3072-1024*i}")
        a("s_waitcnt lgkmcnt(0)\ns_barrier")
        a(f"global_load_dwordx4 v[96:99], v14, {sr(Q,2)}\nv_add_u32 v14, {64*1152}, v14\nglobal_load_dwordx4 v[100:103], v14, {sr(Q,2)}")
    def tiles(self, part): return [0, 1, 6, 7] if part == 0 else [2, 3, 4, 5]
    def a_conv(self, part):
        a = self.a
        tiles = self.tiles(part)
        acc = {t: 16 + 4 * i for i, t in enumerate(tiles)}
        if part == 0:
            order = [(4,2),(5,2),(5,1),(6,1),(6,0),(7,0),(0,1),(0,0),(1,0),(0,7),(0,6),(1,6),(1,5),(2,5),(2,4),(3,4),(3,3),(4,3)]
        else:
            order = [(0,5),(0,4),(0,3),(0,2),(1,4),(1,3),(1,2),(1,1),(2,3),(2,2),(2,1),(2,0),(3,2),(3,1),(3,0),(4,1),(4,0),(5,0)]
        assert all((j + m) in acc for j, m in order) and len(set(order)) == 18
        issued = 0
        done = 0
        ready = {}
        def rdB(m, rho):
            nonlocal issued
            if self.opt.get("x_nob") and rho > 0: return
            a(f"ds_read_b128 {vr(32+4*m,4)}, v6 offset:{3552-512*m+32*(2*rho+1)}")
            issued += 1; ready[("B", m)] = issued
        def rdA(j, rho):
            nonlocal issued
            if self.opt.get("x_noa"): return
            self.a_read_tile(64 + 4 * j, 8 * j + rho)
            issued += 2; ready[("A", j)] = issued
        def wait(*ops):
            nonlocal done
            n = max(ready.get(o, 0) for o in ops)
            if n > done:
                if not self.opt.get("x_now"): a(f"s_waitcnt lgkmcnt({min(issued-n,15)})")
                done = max(n, issued - 15) if issued - n > 15 else n
        seen = []
        for j, m in order:
            if m not in seen: seen.append(m); rdB(m, 0)
        for rho in range(8):
            lastA = {j: i for i, (j, m) in enumerate(order)}
            lastB = {m: i for i, (j, m) in enumerate(order)}
            for i, (j, m) in enumerate(order):
                if j >= 4: ra = 128 + 32 * (j - 4) + 4 * rho; wait(("B", m))
                elif j == 0 and rho == 0: ra = 88; wait(("B", m))
                else: ra = 64 + 4 * j; wait(("A", j), ("B", m))
                c = acc[j + m]
                a(f"v_mfma_f32_16x16x32_bf16 {vr(c,4)}, {vr(ra,4)}, {vr(32+4*m,4)}, {vr(c,4)}")
                if j == 0 and rho == 0:
                    a(f"v_mfma_f32_16x16x32_bf16 {vr(c,4)}, v[92:95], {vr(32+4*m,4)}, {vr(c,4)}")
                if rho < 7:
                    if lastB[m] == i: rdB(m, rho + 1)
                    if lastA[j] == i and j < 4: rdA(j, rho + 1)
    def a_epilogue(self):
        a = self.a
        for i in range(4):
            c = 16 + 4 * i
            a(f"v_cvt_pk_bf16_f32 v{32+2*i}, v{c}, v{c+1}\nv_cvt_pk_bf16_f32 v{33+2*i}, v{c+2}, v{c+3}\nds_write_b64 v8, {vr(32+2*i,2)} offset:{768*i}")
        a("s_waitcnt lgkmcnt(0)\ns_barrier")
        for jj in range(2):
            a(f"ds_read_b64_tr_b16 {vr(40+4*jj,2)}, v9 offset:{32*jj}\nds_read_b64_tr_b16 {vr(42+4*jj,2)}, v10 offset:{32*jj}")
        a("s_waitcnt vmcnt(0)")
        for jj in range(2):
            for i in range(4):
                a(f"v_lshlrev_b32 v{48+8*jj+2*i}, 16, v{96+4*jj+i}\nv_and_b32 v{49+8*jj+2*i}, 0xffff0000, v{96+4*jj+i}")
        for jj in range(2):
            a(f"s_waitcnt lgkmcnt({2-2*jj})")
            for i in range(4):
                z = 40 + 4 * jj + i; t = 64 + 2 * i
                a(f"v_lshlrev_b32 v{t}, 16, v{z}\nv_and_b32 v{t+1}, 0xffff0000, v{z}\nv_pk_mul_f32 {vr(t,2)}, {vr(t,2)}, {vr(48+8*jj+2*i,2)}\nv_cvt_pk_bf16_f32 v{72+4*jj+i}, v{t}, v{t+1}")
            a(f"global_store_dwordx4 v15, {vr(72+4*jj,4)}, {sr(OUT,2)} {self.opt.get('a_out','')}")
            if jj == 0: a(f"v_add_u32 v15, {64*2304}, v15")

    def trig_setup(self, sX, mul, mask, special, scale):
        a = self.a
        a(f"s_lshl_b32 s49, s{sX}, 3\nv_lshrrev_b32 v20, 1, v2\nv_add_u32 v20, s49, v20\nv_and_b32 v21, 1, v2\nv_cvt_f32_u32 v21, v21\nv_mul_f32 v21, {f32(-0.25)}, v21")
        a(f"v_lshl_add_u32 v22, s{sX}, 4, v2")
        if mul != 1: a(f"v_mul_u32_u24 v20, {mul}, v20\nv_and_b32 v20, {mask}, v20")
        a(f"v_cmp_eq_u32 vcc, 1, v22\nv_cndmask_b32 v20, v20, {special}, vcc\nv_cndmask_b32 v21, v21, 0, vcc".replace(f"v_cndmask_b32 v20, v20, {special}, vcc", f"v_cndmask_b32_e64 v20, v20, {special}, vcc").replace("v_cndmask_b32 v21, v21, 0, vcc", "v_cndmask_b32_e64 v21, v21, 0, vcc"))
        a(f"v_cvt_f32_u32 v20, v20\nv_mul_f32 v20, {f32(scale)}, v20")
    def b_p1(self):
        a = self.a
        nt = self.opt.get("x_nt", "nt")
        a(f"v_lshrrev_b32 v4, 4, v0\nv_and_b32 v5, 15, v0\nv_lshlrev_b32 v6, 6, v4\nv_add_u32 v6, s{S_J}, v6\nv_mul_u32_u24 v6, 1152, v6\nv_lshl_add_u32 v6, v5, 3, v6")
        self.ptr_wait()
        for p in range(9):
            a(f"global_load_dwordx2 {vr(32+2*p,2)}, v6, {sr(X,2)} offset:{128*p} {nt}")
        self.cnt_init()
        WA = 200
        a("v_lshrrev_b32 v7, 1, v5\nv_and_b32 v8, 15, v4\nv_xor_b32 v8, v8, v7\nv_lshlrev_b32 v8, 4, v8\nv_lshl_add_u32 v8, v7, 8, v8\nv_and_b32 v7, 1, v5\nv_lshl_add_u32 v8, v7, 3, v8\nv_lshrrev_b32 v7, 4, v4\nv_lshl_add_u32 v8, v7, 11, v8")
        a("v_lshlrev_b32 v7, 2, v5\nv_mul_u32_u24 v9, 57, v7\nv_lshrrev_b32 v9, 9, v9\nv_mul_u32_u24 v9, 9, v9\nv_sub_u32 v7, v7, v9")
        for s in range(9):
            a(f"v_add_u32 v9, {s}, v7\nv_subrev_u32 v10, 9, v9\nv_min_u32 v9, v9, v10\nv_lshl_add_u32 v{WA+s}, v9, 12, v8")
        a("v_and_b32 v2, 15, v1\nv_lshrrev_b32 v3, 4, v1")
        a(f"s_lshr_b32 s50, s{S_WAVE}, 1\ns_and_b32 s51, s{S_WAVE}, 1")
        self.trig_setup(50, 57, 63, 32, 1.0 / 64)
        a("v_lshlrev_b32 v22, 3, v3\nv_cvt_f32_u32 v22, v22\nv_fma_f32 v21, v20, v22, v21")
        a(f"v_mul_f32 v23, {f32(24.0)}, v20")
        for kk in range(2):
            for i in range(4):
                a(f"v_cos_f32 v24, v21\nv_add_f32 v21, v21, v20\nv_cos_f32 v25, v21\nv_add_f32 v21, v21, v20\nv_cvt_pk_bf16_f32 v{68+4*kk+i}, v24, v25")
            if kk == 0: a("v_add_f32 v21, v21, v23")
        self.trig_setup(51, 1, 0, 16, 1.0 / 32)
        a("v_lshlrev_b32 v22, 2, v3\nv_cvt_f32_u32 v22, v22\nv_fma_f32 v21, v20, v22, v21")
        a(f"v_mul_f32 v23, {f32(12.0)}, v20")
        for i in range(4):
            a(f"v_cos_f32 v24, v21\nv_add_f32 v21, v21, v20\nv_cos_f32 v25, v21\nv_add_f32 v21, v21, v20\nv_cvt_pk_bf16_f32 v{76+i}, v24, v25")
            if i == 1: a("v_add_f32 v21, v21, v23")
        a("s_lshl_b32 s49, s51, 11\nv_xor_b32 v10, v2, v3\nv_lshlrev_b32 v10, 4, v10\nv_lshl_add_u32 v10, v3, 8, v10\nv_add_u32 v10, s49, v10\nv_xor_b32 v11, 64, v10\nv_add_u32 v11, 1024, v11")
        a(f"v_lshl_add_u32 v12, s51, 4, v2\nv_mul_u32_u24 v12, 1288, v12\nv_add_u32 v12, {L2}, v12")
        a("s_lshr_b32 s49, s50, 1\ns_mul_i32 s49, s49, 320\ns_and_b32 s52, s50, 1\ns_lshl_b32 s52, s52, 3\ns_add_u32 s49, s49, s52")
        a("v_lshrrev_b32 v13, 1, v3\nv_mul_u32_u24 v13, 640, v13\nv_and_b32 v14, 1, v3\nv_lshl_add_u32 v13, v14, 2, v13\nv_add3_u32 v13, v13, v12, s49")
        a("s_lshl_b32 s49, s50, 3\ns_sub_u32 s49, 36, s49\nv_lshlrev_b32 v14, 1, v3\nv_sub_u32 v14, s49, v14\nv_mul_u32_u24 v9, 57, v14\nv_lshrrev_b32 v9, 9, v9\nv_mul_u32_u24 v9, 9, v9\nv_sub_u32 v14, v14, v9")
        for e in range(9):
            a(f"v_add_u32 v9, {e}, v14\nv_subrev_u32 v15, 9, v9\nv_min_u32 v9, v9, v15\nv_lshl_add_u32 v{116+e}, v9, 5, v13")
        a(f"v_lshrrev_b32 v14, 2, v1\nv_mul_u32_u24 v14, 1288, v14\nv_and_b32 v9, 3, v1\nv_mul_u32_u24 v15, 320, v9\ns_lshl_b32 s49, s50, 4\ns_add_u32 s49, s49, {L2}\nv_add3_u32 v14, v14, v15, s49")
        a(f"v_lshrrev_b32 v15, 2, v2\nv_lshl_add_u32 v15, s51, 2, v15\nv_mul_u32_u24 v15, {19*16384}, v15\nv_lshl_add_u32 v15, v3, 6, v15\nv_lshl_add_u32 v15, v9, 4, v15")
        a(f"s_lshl_b32 s49, s50, 14\ns_lshl_b32 s52, s{S_J}, 8\ns_add_u32 s49, s49, s52\ns_add_u32 s49, s49, {VOFF}\nv_add_u32 v15, s49, v15")
        c = lambda k: math.cos(2 * math.pi * k / 9); s_ = lambda k: math.sin(2 * math.pi * k / 9)
        CN = {"c1": c(1), "c2": c(2), "c4": c(4), "s1": s_(1), "s2": s_(2), "s3": s_(3), "s4": s_(4), "mh": -0.5}
        CR = {}
        for i, (k, v) in enumerate(CN.items()):
            CR[k] = sr(60 + 2 * i, 2)
            a(f"s_mov_b32 s{60+2*i}, {f32(v)}\ns_mov_b32 s{61+2*i}, {f32(v)}")
        a("v_mov_b32 v9, 0xffff")
        a("s_waitcnt vmcnt(0)")
        self.stamp(1)
        for s in range(9):
            a(f"v_bfi_b32 v{50+2*s}, v9, v{32+2*s}, v{32+2*((s-1)%9)}\nv_bfi_b32 v{51+2*s}, v9, v{33+2*((s-2)%9)}, v{33+2*((s-3)%9)}")
            a(f"ds_write_b64 v{WA+s}, {vr(50+2*s,2)}")
        a("s_waitcnt lgkmcnt(0)\ns_barrier")
        order = [1, 8, 2, 7, 4, 5, 3, 6, 0]
        for i, b in enumerate(order):
            a(f"ds_read_b128 {vr(128+8*i,4)}, v10 offset:{4096*b}\nds_read_b128 {vr(132+8*i,4)}, v11 offset:{4096*b}")
        for i, b in enumerate(order):
            a(f"s_waitcnt lgkmcnt({min(15, 17-2*i)})")
            a(f"v_mfma_f32_16x16x32_bf16 {vr(80+4*b,4)}, v[68:71], {vr(128+8*i,4)}, 0")
            a(f"s_waitcnt lgkmcnt({min(15, 16-2*i)})")
            a(f"v_mfma_f32_16x16x32_bf16 {vr(80+4*b,4)}, v[72:75], {vr(132+8*i,4)}, {vr(80+4*b,4)}")
        def P(r): return vr(r, 2)
        add = lambda d, x, y: a(f"v_pk_add_f32 {P(d)}, {P(x)}, {P(y)}")
        sub = lambda d, x, y: a(f"v_pk_add_f32 {P(d)}, {P(x)}, {P(y)} neg_lo:[0,1] neg_hi:[0,1]")
        def fma(d, x, k, y, nk=False, ny=False):
            m = ""
            if nk or ny: m = f" neg_lo:[0,{int(nk)},{int(ny)}] neg_hi:[0,{int(nk)},{int(ny)}]"
            a(f"v_pk_fma_f32 {P(d)}, {P(x)}, {CR[k]}, {P(y)}{m}")
        ZR = [[0] * 9, [0] * 9]
        gens = []
        for h in range(2):
            g = lambda b, h=h: 80 + 4 * b + 2 * h
            T = 128 + 44 * h
            a1, a2, a3, a4, b1, b2, b3, b4, t, u, w, p, q, C0, C1, C2, C3, C4, S1, S2, S3, S4 = [T + 2 * i for i in range(22)]
            gens.append((g, (a1, a2, a3, a4, b1, b2, b3, b4, t, u, w, p, q, C0, C1, C2, C3, C4, S1, S2, S3, S4)))
        def both(fn):
            for h in range(2): fn(gens[h][0], *gens[h][1])
        both(lambda g, a1, a2, a3, a4, b1, b2, b3, b4, *r: (add(a1, g(1), g(8)), sub(b1, g(1), g(8))))
        both(lambda g, a1, a2, a3, a4, b1, b2, b3, b4, *r: (add(a2, g(2), g(7)), sub(b2, g(2), g(7))))
        both(lambda g, a1, a2, a3, a4, b1, b2, b3, b4, *r: (add(a4, g(4), g(5)), sub(b4, g(4), g(5))))
        both(lambda g, a1, a2, a3, a4, b1, b2, b3, b4, *r: (add(a3, g(3), g(6)), sub(b3, g(3), g(6))))
        def body(g, a1, a2, a3, a4, b1, b2, b3, b4, t, u, w, p, q, C0, C1, C2, C3, C4, S1, S2, S3, S4):
            add(t, a1, a2); sub(p, a1, a4); sub(q, a2, a4); add(t, t, a4); add(u, g(0), a3); fma(w, a3, "mh", g(0))
            add(C0, u, t); fma(C3, t, "mh", u)
            fma(C1, p, "c1", w); fma(C2, p, "c2", w); fma(C4, p, "c4", w)
            fma(C1, q, "c2", C1); fma(C2, q, "c4", C2); fma(C4, q, "c1", C4)
            sub(S3, b1, b2); add(p, b1, b2); add(q, b2, b4); a(f"v_pk_mul_f32 {P(b3)}, {P(b3)}, {CR['s3']}"); add(S3, S3, b4)
            fma(S1, p, "s1", b3); fma(S2, p, "s2", b3, ny=True); fma(S4, p, "s4", b3)
            a(f"v_pk_mul_f32 {P(S3)}, {P(S3)}, {CR['s3']}")
            fma(S1, q, "s4", S1); fma(S2, q, "s1", S2, nk=True); fma(S4, q, "s2", S4, nk=True)
        both(body)
        Ls = self.lab("Lsp")
        r0 = gens[0][1]; Cs = r0[13:18]; Ss = [None] + list(r0[18:22])
        a(f"s_cmp_lg_u32 s50, 0\ns_cbranch_scc1 {Ls}\ns_mov_b64 exec, 0xffff")
        for e in range(9):
            k = e if e <= 4 else 9 - e
            src = "0" if e == 0 else (f"v{Ss[k]+1}" if e <= 4 else f"-v{Ss[k]+1}")
            m = (e + 4) % 9
            off = (m >> 2) * 320 + (36 + ((m >> 1) & 1)) * 8 + (m & 1) * 4
            a(f"v_cvt_pk_bf16_f32 v{16+e}, v{Cs[k]+1}, {src}\nds_write_b32 v12, v{16+e} offset:{off}")
        for k in range(5): a(f"v_mov_b32 v{Cs[k]+1}, 0")
        for k in range(1, 5): a(f"v_mov_b32 v{Ss[k]+1}, 0")
        a(f"s_mov_b64 exec, -1\n{Ls}:")
        for h in range(2):
            r = gens[h][1]; C = r[13:18]; S = [None] + list(r[18:22])
            ZR[h][0] = C[0]
            for k in range(1, 5):
                ZR[h][k] = 80 + 4 * k + 2 * h; ZR[h][9 - k] = 80 + 4 * (9 - k) + 2 * h
        def combo(h, e):
            if e == 0: return
            r = gens[h][1]; C = r[13:18]; S = [None] + list(r[18:22])
            k = e if e <= 4 else 9 - e
            ng = "neg_lo:[0,1]" if e <= 4 else "neg_hi:[0,1]"
            a(f"v_pk_add_f32 {P(ZR[h][e])}, {P(C[k])}, {P(S[k])} op_sel:[0,1] op_sel_hi:[1,0] {ng}")
        for e in range(9):
            combo(0, e); combo(1, (e + 1) % 9)
            z0, z1 = ZR[0][e], ZR[1][(e + 1) % 9]
            a(f"v_cvt_pk_bf16_f32 v{32+2*e}, v{z0}, v{z1}\nv_cvt_pk_bf16_f32 v{33+2*e}, v{z0+1}, v{z1+1}")
            a(f"ds_write2_b32 v{116+e}, v{32+2*e}, v{33+2*e} offset0:0 offset1:4")
        a("s_waitcnt lgkmcnt(0)\ns_barrier")
        self.go_preload()
        for r in range(5):
            for T in range(2):
                for h2 in range(2):
                    a(f"ds_read_b64_tr_b16 {vr(128+8*r+4*T+2*h2,2)}, v14 offset:{64*r+8*T+20608*h2}")
        sc = "sc1" if self.mode == "fused" else ""
        Le = self.lab("Lse")
        for r in range(5):
            a(f"s_waitcnt lgkmcnt({min(15, 18-4*r)})")
            a(f"v_mfma_f32_16x16x32_bf16 {vr(176+8*r,4)}, {vr(128+8*r,4)}, v[76:79], 0")
            a(f"s_waitcnt lgkmcnt({min(15, 16-4*r)})")
            a(f"v_mfma_f32_16x16x32_bf16 {vr(180+8*r,4)}, {vr(132+8*r,4)}, v[76:79], 0")
        for r in range(5):
            if r == 4: a(f"s_cmp_eq_u32 s50, 3\ns_cbranch_scc1 {Le}")
            for i in range(4): a(f"v_cvt_pk_bf16_f32 v{32+4*r+i}, v{176+8*r+2*i}, v{177+8*r+2*i}")
            a(f"global_store_dwordx4 v15, {vr(32+4*r,4)}, {sr(WS,2)} {sc}")
            if r < 4: a("v_add_u32 v15, 0x10000, v15")
        a(f"{Le}:")
    def b_p2_setup(self):
        a = self.a
        a("v_and_b32 v2, 15, v1\nv_lshrrev_b32 v3, 4, v1")
        a(f"s_mul_i32 s50, s{S_J}, 57\ns_lshr_b32 s50, s50, 9\ns_mul_i32 s51, s50, 9\ns_sub_u32 s51, s{S_J}, s51")
        a(f"s_lshr_b32 s52, s{S_WAVE}, 2\ns_lshl_b32 s53, s50, 1\ns_add_u32 s53, s53, s52")
        a("s_and_b32 s54, s53, 15\ns_cmp_eq_u32 s54, 0\ns_cselect_b32 s54, 0, -1")
        a(f"s_and_b32 s49, s{S_WAVE}, 3\ns_lshl_b32 s49, s49, 9\ns_add_u32 s55, s49, s53")
        a(f"v_lshl_add_u32 v20, v2, 5, s55\nv_cvt_f32_u32 v20, v20\nv_mul_f32 v20, {f32(1.0/2048)}, v20\nv_lshlrev_b32 v22, 3, v3\nv_cvt_f32_u32 v22, v22\nv_mul_f32 v21, v20, v22\nv_mul_f32 v23, {f32(24.0)}, v20")
        for kk in range(2):
            for i in range(4):
                d = 4 * kk + i
                a(f"v_cos_f32 v24, v21\nv_sin_f32 v26, v21\nv_add_f32 v21, v21, v20\nv_cos_f32 v25, v21\nv_sin_f32 v27, v21\nv_add_f32 v21, v21, v20")
                a(f"v_cvt_pk_bf16_f32 v{64+d}, v24, v25\nv_cvt_pk_bf16_f32 v{80+d}, v26, v27\nv_cvt_pk_bf16_f32 v{72+d}, -v26, -v27")
                a(f"v_and_b32 v{88+d}, s54, v{64+d}\nv_and_b32 v{72+d}, s54, v{72+d}")
            if kk == 0: a("v_add_f32 v21, v21, v23")
        a(f"s_and_b32 s49, s50, 7\ns_mul_i32 s49, s49, 19\ns_lshl_b32 s60, s51, 1\ns_add_u32 s60, s60, s49\ns_lshl_b32 s60, s60, 14\ns_add_u32 s60, s60, {VOFF}")
        a("s_add_u32 s61, s60, 8192\ns_add_u32 s62, s60, 16384\ns_add_u32 s63, s60, 24576")
        a(f"s_add_u32 s49, s49, 18\ns_lshl_b32 s64, s49, 14\ns_add_u32 s64, s64, {VOFF}\ns_lshr_b32 s49, s51, 2\ns_lshl_b32 s49, s49, 6\ns_add_u32 s64, s64, s49\ns_and_b32 s49, s51, 3\ns_lshl_b32 s49, s49, 2\ns_add_u32 s64, s64, s49")
        a("v_lshlrev_b32 v4, 4, v0")
        a("v_bfe_u32 v9, v0, 2, 6\nv_and_b32 v10, 3, v0\nv_lshlrev_b32 v5, 8, v9\nv_lshl_add_u32 v5, v10, 4, v5")
        def rho(dst, src, tmp):
            a(f"v_and_b32 v{dst}, 35, v{src}\nv_bfe_u32 v{tmp}, v{src}, 2, 1\nv_lshl_add_u32 v{dst}, v{tmp}, 4, v{dst}\nv_bfe_u32 v{tmp}, v{src}, 3, 2\nv_lshl_add_u32 v{dst}, v{tmp}, 2, v{dst}")
        rho(7, 9, 11)
        a(f"v_mul_u32_u24 v7, 544, v7\nv_lshl_add_u32 v7, v10, 3, v7\nv_add_u32 v7, {L3+512}, v7")
        a("v_lshrrev_b32 v9, 4, v0")
        rho(6, 9, 11)
        a(f"v_mul_u32_u24 v6, 544, v6\nv_lshl_add_u32 v6, v10, 5, v6\nv_bfe_u32 v11, v0, 3, 1\nv_lshl_add_u32 v6, v11, 7, v6\nv_bfe_u32 v11, v0, 2, 1\nv_lshl_add_u32 v6, v11, 4, v6\nv_add_u32 v6, {L3}, v6")
        a("s_lshl_b32 s49, s52, 1\ns_cmp_eq_u32 s53, 16\ns_cselect_b32 s49, 1, s49\ns_lshl_b32 s65, s49, 5\ns_lshl_b32 s49, s49, 3")
        a(f"v_lshrrev_b32 v9, 2, v1\nv_mul_u32_u24 v9, 544, v9\nv_add_u32 v9, {L3}, v9\nv_and_b32 v10, 3, v1\nv_lshl_add_u32 v8, v10, 3, v9\nv_add_u32 v8, s65, v8")
        a("v_add_u32 v9, s49, v9\nv_cmp_eq_u32 vcc, 3, v10")
        for comp in range(2):
            for cs in range(2):
                a(f"v_add_u32 v11, {8+256*comp+32*cs}, v8\nv_add_u32 v28, {512+8*cs}, v9\nv_cndmask_b32 v{16+2*comp+cs}, v11, v28, vcc")
        a(f"s_lshl_b32 s49, s{S_WAVE}, 12\nv_lshrrev_b32 v11, 1, v2\nv_add_u32 v11, v11, v3\nv_and_b32 v11, 3, v11\nv_lshlrev_b32 v11, 4, v11\nv_lshl_add_u32 v20, v2, 6, v11\nv_add_u32 v20, s49, v20")
        a("v_lshrrev_b32 v9, 2, v1\nv_lshrrev_b32 v11, 3, v1\nv_add_u32 v21, v11, v10\nv_and_b32 v21, 3, v21\nv_sub_u32 v22, v11, v10\nv_add_u32 v22, 3, v22\nv_and_b32 v22, 3, v22")
        a("v_lshlrev_b32 v11, 6, v9\nv_add_u32 v11, s49, v11\nv_lshl_add_u32 v21, v21, 4, v11\nv_lshl_add_u32 v22, v22, 4, v11")
        a(f"v_lshl_add_u32 v9, v9, 5, s55\nv_sub_u32 v11, 2048, v9\nv_and_b32 v11, 2047, v11\nv_lshlrev_b32 v10, 4, v10\nv_add_u32 v10, 1152, v10\nv_mad_u32_u24 v23, v9, s68, v10\nv_mad_u32_u24 v24, v11, s68, v10".replace("v_lshl_add_u32 v9, v9, 5, s55", "s_movk_i32 s68, 2304\nv_lshl_add_u32 v9, v9, 5, s55"))
        a("s_lshl_b32 s66, s51, 7\ns_sub_u32 s67, 1088, s66\nv_add_u32 v25, s67, v23\nv_add_u32 v26, s67, v24\nv_add_u32 v23, s66, v23\nv_add_u32 v24, s66, v24")
    def b_p2(self, endlab):
        a = self.a
        sc = "sc1" if self.mode == "fused" else ""
        for i in range(4):
            a(f"buffer_load_dwordx4 {vr(96+4*i,4)}, v4, {sr(SRD_WS,4)}, s{60+i} offen {sc}")
        a(f"buffer_load_dword v112, v5, {sr(SRD_WS,4)}, s64 offen {sc}")
        for i in range(4):
            a(f"s_waitcnt vmcnt({4-i})\nds_write_b128 v6, {vr(96+4*i,4)} offset:{(i&1)*17408+(i>>1)*256}")
        a("s_waitcnt vmcnt(0)\nds_write_b32 v7, v112\ns_waitcnt lgkmcnt(0)\ns_barrier")
        self.stamp(5)
        a(f"s_cmp_eq_u32 s53, 17\ns_cbranch_scc1 {endlab}")
        M = {(0, 0): 64, (0, 1): 72, (1, 0): 80, (1, 1): 88}
        ACC = {(0, 0): 32, (0, 1): 36, (0, 2): 40, (1, 0): 44, (1, 1): 48, (1, 2): 52}
        jobs = [(comp, cs, kk, T) for kk in range(2) for cs in range(2) for comp in range(2) for T in range(3)]
        D = 7
        def rd(i):
            comp, cs, kk, T = jobs[i]
            for h in range(2):
                if T < 2: a(f"ds_read_b64_tr_b16 {vr(128+4*i+2*h,2)}, v8 offset:{kk*17408+h*8704+comp*256+T*128+cs*32}")
                else: a(f"ds_read_b64_tr_b16 {vr(128+4*i+2*h,2)}, v{16+2*comp+cs} offset:{kk*17408+h*8704}")
        for i in range(D): rd(i)
        first = set()
        for i, (comp, cs, kk, T) in enumerate(jobs):
            rem = min(len(jobs), i + D) - i - 1
            a(f"s_waitcnt lgkmcnt({2*rem})")
            c = ACC[(comp, T)]
            src = vr(c, 4) if (comp, T) in first else "0"
            first.add((comp, T))
            a(f"v_mfma_f32_16x16x32_bf16 {vr(c,4)}, {vr(128+4*i,4)}, {vr(M[(comp,cs)]+4*kk,4)}, {src}")
            if i + D < len(jobs): rd(i + D)
        self.stamp(6)
        a("v_cmp_eq_u32 vcc, 3, v3\nv_cndmask_b32 v52, v52, v53, vcc")
        for i in range(0, 8, 2):
            a(f"v_pk_add_f32 {vr(96+i,2)}, {vr(32+i,2)}, {vr(44+i,2)} neg_lo:[0,1] neg_hi:[0,1]\nv_pk_add_f32 {vr(106+i,2)}, {vr(32+i,2)}, {vr(44+i,2)}")
        a("v_sub_f32 v104, v40, v52\nv_add_f32 v114, v40, v52")
        Dm, Dp = 96, 106
        for x, (b, rev) in enumerate(((Dm, 0), (Dp, 1), (Dp, 0), (Dm, 1))):
            for i in range(4):
                if rev: a(f"v_cvt_pk_bf16_f32 v{128+4*x+i}, v{b+8-2*i}, v{b+7-2*i}")
                else: a(f"v_cvt_pk_bf16_f32 v{128+4*x+i}, v{b+2*i}, v{b+2*i+1}")
            a(f"ds_write_b128 v20, {vr(128+4*x,4)} offset:{L4+1024*x}")
        a("s_waitcnt lgkmcnt(0)")
        for x in range(4):
            a(f"ds_read_b128 {vr(144+4*x,4)}, v{21+(x&1)} offset:{L4+1024*x}")
        so = self.opt.get("b_out", "")
        ad = (23, 25, 24, 26)
        for x in range(4):
            if x == 2: a(f"s_cmp_eq_u32 s54, 0\ns_cbranch_scc1 {endlab}")
            a(f"s_waitcnt lgkmcnt({3-x})\nglobal_store_dwordx4 v{ad[x]}, {vr(144+4*x,4)}, {sr(OUT,2)} {so}")

    def dispatch(self, LA, LB1, LB2):
        a = self.a
        a(f"s_add_u32 s{S_J}, s48, 64\ns_cmp_eq_u32 s3, 0\ns_cbranch_scc1 {LB2}")
        a(f"s_sub_u32 s{S_J}, s2, 144\ns_cmp_ge_u32 s3, 27\ns_cbranch_scc1 {LB2}")
        a(f"s_sub_u32 s{S_J}, s2, 152\ns_cmp_ge_u32 s3, 19\ns_cbranch_scc1 {LB1}")
        a(f"s_mul_i32 s{S_J}, s48, 18\ns_add_u32 s{S_J}, s{S_J}, s3\ns_sub_u32 s{S_J}, s{S_J}, 1")
    def kd(self, kname):
        self.a(f""".section .rodata,"a"
.p2align 6
.amdhsa_kernel {kname}
.amdhsa_next_free_vgpr 256
.amdhsa_next_free_sgpr 102
.amdhsa_accum_offset 256
.amdhsa_group_segment_fixed_size 0
.amdhsa_kernarg_size 112
.amdhsa_user_sgpr_count 2
.amdhsa_user_sgpr_kernarg_segment_ptr 1
.amdhsa_system_sgpr_workgroup_id_x 1
.amdhsa_float_denorm_mode_32 3
.end_amdhsa_kernel
.text""")
    def a_p2_all(self, fin, npre):
        a = self.a
        LQ = self.lab("LAq"); LE = self.lab("LAe")
        a(f"s_bitcmp1_b32 s{S_J}, 0\ns_cbranch_scc1 {LQ}")
        for part in range(2):
            if part: a(f"{LQ}:")
            for p in range(npre, 4 - part): self.a_hprep_pass(p)
            self.stamp(3)
            def first():
                a(f"s_waitcnt lgkmcnt(0)")
                self.a_resident((7, 6) if part == 0 else (5,))
            def second():
                a(f"ds_read_b128 v[88:91], v124 offset:{KVL+4576-30}")
                self.a_resident((5, 4) if part == 0 else (4,))
                for j in (1, 2, 3): self.a_read_tile(64 + 4 * j, 8 * j)
            self.wave_poll(125, first)
            self.stamp(4)
            self.a_kv_load(part, second)
            self.stamp(5)
            self.a_conv(part)
            if part == 0: a(f"s_branch {LE}")
        a(f"{LE}:\ns_nop 7")
        self.stamp(6)
        self.a_epilogue()
        a(f"s_branch {fin}")
    def build(self):
        a = self.a
        hdr = open("cdna_kernels/" + NAME + ".s.ref").read().split("\n")
        head = [l for l in hdr if l.startswith(";") and "@launch" not in l and "Override" not in l and "grid=ceil" not in l][:15]
        cb = self.opt.get("codebytes", 16384)
        if True:
            kn = NAME + "_kernel"
            head += [f"; @launch grid=({NWG},1,1) block=(512,1,1) lds={LDS_BYTES}"]
            a('.amdgcn_target "amdgcn-amd-amdhsa--gfx950"\n.text')
            self.prologue(kn, "L_end", cb)
            self.dispatch("x", "L_b1", "L_b2")
            self.a_p1_loads(); self.a_h_addr(); self.cnt_init()
            hpos = self.opt.get("hpos", -1)
            nh = 0
            self.a_setup()
            a("s_barrier")
            if hpos == "setup": nh = self.a_h_loads()
            self.a_p1_compute(nh, hpos)
            self.stamp(1)
            npre = self.opt.get("npre", 2)
            for p in range(npre):
                a(f"s_waitcnt vmcnt({6-2*p+3})"); self.a_hprep_pass(p)
            a("s_waitcnt vmcnt(0)")
            self.publish(S_J)
            self.stamp(2)
            self.a_p2_all("L_fin", npre)
            a("L_b1:"); self.b_p1()
            a("s_mov_b32 s78, 1\ns_branch L_b2go")
            a("L_b2:\ns_mov_b32 s78, 0"); self.ptr_wait()
            a(f"s_cmp_lg_u32 s2, 0\ns_cbranch_scc1 L_b2w\nv_min_u32 v12, 207, v0\nv_lshlrev_b32 v12, 7, v12\nv_add_u32 v12, {FLAGOFF}, v12\nv_mov_b32 v13, 0")
            a(f"global_store_dword v12, v13, {sr(WS,2)} sc0 sc1\ns_waitcnt vmcnt(0)\ns_barrier\nv_mov_b32 v12, 1\ns_cmp_lg_u32 s{S_WAVE}, 0\ns_cbranch_scc1 L_b2go\ns_mov_b64 exec, 1")
            a(f"global_store_dword v13, v12, {sr(DBG,2)} sc0 sc1\ns_mov_b64 exec, -1\ns_branch L_b2go")
            a(f"L_b2w:\ns_cmp_lg_u32 s{S_WAVE}, 0\ns_cbranch_scc1 L_b2go")
            self.wait_go()
            a("L_b2go:")
            self.stamp(2)
            self.b_p2_setup()
            a(f"s_cmp_eq_u32 s78, 0\ns_cbranch_scc1 L_b2p\ns_waitcnt vmcnt(0)\ns_add_u32 s48, s{S_J}, 144")
            self.publish(48)
            a("L_b2p:")
            self.stamp(3)
            a("s_movk_i32 s48, 144")
            self.poll(48, 64, False)
            self.stamp(4)
            self.b_p2("L_fin")
            a("L_fin:"); self.dump_stamps(0)
            if self.opt.get("spin"):
                a("s_waitcnt vmcnt(0)")
                a("s_memrealtime s[96:97]\ns_waitcnt lgkmcnt(0)\ns_mov_b32 s99, s96")
                a("L_sp1:\ns_memrealtime s[96:97]\ns_waitcnt lgkmcnt(0)\ns_sub_u32 s96, s96, s99\ns_cmp_lt_u32 s96, 500\ns_cbranch_scc1 L_sp1")
                if self.opt.get("spin") == 2: a("buffer_wbl2 sc1\ns_waitcnt vmcnt(0)")
                a("L_sp2:\ns_memrealtime s[96:97]\ns_waitcnt lgkmcnt(0)\ns_sub_u32 s96, s96, s99\ns_cmp_lt_u32 s96, 2000\ns_cbranch_scc1 L_sp2")
            if self.opt.get("amp") is not None:
                a("s_waitcnt vmcnt(0)")
                self.stamp(7)
                r = self.opt.get("amprole", "A")
                a("s_lshr_b32 s3, s2, 3\ns_sub_u32 s3, s3, 1\ns_cmp_lt_u32 s3, 18\n" + ("s_cbranch_scc0 L_end" if r == "A" else "s_cbranch_scc1 L_end"))
                if r != "A": a("s_cmp_lt_u32 s3, 26\ns_cbranch_scc0 L_end")
                a("s_sub_u32 s98, s98, s96\ns_lshl_b32 s98, s98, 3\ns_min_u32 s98, s98, 100000\ns_memrealtime s[96:97]\ns_waitcnt lgkmcnt(0)\ns_mov_b32 s99, s96")
                a("L_amp:\ns_memrealtime s[96:97]\ns_waitcnt lgkmcnt(0)\ns_sub_u32 s96, s96, s99\ns_cmp_lt_u32 s96, s98\ns_cbranch_scc1 L_amp")
            a("L_end:\ns_endpgm\n.fill 1024, 4, 0xbf800000"); self.kd(kn)
        if self.stamps:
            import json
            R = {"A0": [w for w in range(NWG) if 1 <= w >> 3 <= 18 and ((w >> 3) - 1) % 2 == 0], "A1": [w for w in range(NWG) if 1 <= w >> 3 <= 18 and ((w >> 3) - 1) % 2 == 1],
                 "B1": [w for w in range(NWG) if 19 <= w >> 3 <= 26], "B2": [w for w in range(NWG) if w >> 3 == 0 or w >> 3 >= 27]}
            head.append("; ROLES " + json.dumps(R))
        return "\n".join(head) + "\n" + a.text()

if __name__ == "__main__":
    import argparse
    ap = argparse.ArgumentParser()
    ap.add_argument("--mode", default="fused"); ap.add_argument("--stamps", action="store_true"); ap.add_argument("-o", default="/dev/stdout")
    ap.add_argument("--opt", nargs="*", default=[])
    args = ap.parse_args()
    opt = {}
    for o in args.opt:
        k, v = o.split("=", 1)
        opt[k] = int(v) if v.lstrip("-").isdigit() else v
    open(args.o, "w").write(G(args.mode, args.stamps, opt).build())
```

```python
import sys, math, struct
from asmlib import Asm, vr, sr

NAME = "concat_heads__ssm_conv_h3__spectral_fnet__prompt"
NWG = 256
KVOFF = 0
VOFF = 0x240000
FLAGOFF = 0x500000
STAMPOFF = 0x600000
CLEANER = 2
WSBYTES = 268435456
CS = 16944
KVL = 12288
L1, L2, L3, L4 = 0, 36864, 78080, 0
LCNT = 8 * CS
LDS_BYTES = 8 * CS + 16

def f32(x): return "0x%08x" % struct.unpack("<I", struct.pack("<f", x))[0]

S_WAVE, S_J = 6, 7
Q, K, V, SH, H, DD, X, OUT, DBG, WS = 8, 10, 12, 14, 16, 18, 20, 30, 32, 34
SRD_K, SRD_V, SRD_H, SRD_WS = 36, 40, 44, 56

class G:
    def __init__(self, mode="fused", stamps=False, opt=None):
        self.a = Asm(); self.mode = mode; self.stamps = stamps; self.opt = opt or {}
        self.nlab = 0
        self.clk = "s_memtime" if self.opt.get("cyc") else "s_memrealtime"
    def lab(self, p="L"):
        self.nlab += 1; return f"{p}_{self.nlab}"
    def stamp(self, i):
        if self.opt.get("amp") == i:
            self.a("s_memrealtime s[98:99]\ns_waitcnt lgkmcnt(0)")
        if self.stamps:
            self.a(f"{self.clk} s[{80+2*i}:{81+2*i}]\ns_waitcnt lgkmcnt(0)")
    def dump_stamps(self, slot):
        a = self.a
        if not self.stamps: return
        L = self.lab("Lst")
        a("s_waitcnt vmcnt(0)")
        self.stamp(7)
        for i in range(8): a(f"v_mov_b32 v{2+i}, s{80+2*i}")
        a(f"s_lshl_b32 s3, s2, 3\ns_add_u32 s3, s3, s{S_WAVE}\ns_lshl_b32 s3, s3, 5\ns_add_u32 s3, s3, {STAMPOFF + slot*65536}\nv_mov_b32 v10, s3\ns_mov_b64 exec, 1")
        a(f"global_store_dwordx4 v10, v[2:5], {sr(WS,2)}\nglobal_store_dwordx4 v10, v[6:9], {sr(WS,2)} offset:16")
        a(f"{L}:")

    def entry(self, kname, codebytes):
        a = self.a
        a(f".globl {kname}\n.p2align 8\n.type {kname},@function\n{kname}:")
        a(f"s_load_dwordx16 s[8:23], s[0:1], 0\ns_load_dwordx2 s[30:31], s[0:1], 88\ns_load_dwordx4 s[32:35], s[0:1], 96")
        if self.stamps:
            for i in range(8): a(f"s_mov_b32 s{80+2*i}, 0")
            a(f"{self.clk} s[80:81]")
        if self.opt.get("amp") is not None: a("s_memrealtime s[96:97]")
        a(f"s_lshr_b32 s3, s2, 3\ns_and_b32 s48, s2, 7\nv_lshrrev_b32 v2, 6, v0\nv_and_b32 v1, 63, v0\ns_cmp_ge_u32 s2, {NWG}\nv_readfirstlane_b32 s{S_WAVE}, v2\ns_cbranch_scc1 L_end")
        a(f"v_lshlrev_b32 v2, 7, v0\ns_cmp_eq_u32 s2, {CLEANER}\ns_cbranch_scc0 L_nc")
        a(f"v_min_u32 v2, {207*128}, v2\nv_add_u32 v2, {FLAGOFF}, v2\nv_mov_b32 v3, 0\nv_mov_b32 v4, 1\ns_waitcnt lgkmcnt(0)")
        a(f"global_store_dword v2, v3, {sr(WS,2)} sc0 sc1\ns_cmp_lg_u32 s{S_WAVE}, 0\ns_waitcnt vmcnt(0)\ns_barrier\ns_cbranch_scc1 L_fin\ns_mov_b64 exec, 1")
        a(f"global_store_dword v3, v4, {sr(DBG,2)} sc0 sc1\ns_mov_b64 exec, -1\ns_branch L_fin\nL_nc:")
        if not self.opt.get("nopf"): a(f"s_getpc_b64 s[4:5]\nv_min_u32 v2, {codebytes}, v2\nglobal_load_dword v255, v2, s[4:5]")
        a(f"s_lshl_b32 s{S_J}, s48, 4\ns_add_u32 s{S_J}, s{S_J}, s3\ns_sub_u32 s{S_J}, s{S_J}, 16\ns_cmp_ge_u32 s3, 16\ns_cbranch_scc1 L_a")
        a(f"s_cmp_ge_u32 s3, 8\ns_cbranch_scc0 L_m\ns_sub_u32 s{S_J}, s2, 64")
        self.b_x_loads()
        a("s_branch L_b1")
        a(f"L_m:\ns_mul_i32 s{S_J}, s3, 6\ns_add_u32 s{S_J}, s{S_J}, s48\ns_add_u32 s{S_J}, s{S_J}, 61\ns_cmp_ge_u32 s48, 2\ns_cbranch_scc1 L_b2")
        a(f"s_lshl_b32 s{S_J}, s3, 1\ns_add_u32 s{S_J}, s{S_J}, s48\ns_add_u32 s{S_J}, s{S_J}, 128\nL_a:")
    def srd(self, r, ptr, nbytes):
        self.a(f"s_mov_b64 {sr(r,2)}, {sr(ptr,2)}\ns_mov_b32 s{r+2}, {nbytes}\ns_mov_b32 s{r+3}, 0x20000")

    def go_preload(self):
        if self.mode == "fused":
            self.a(f"v_mov_b32 v126, 0\nglobal_load_dword v127, v126, {sr(DBG,2)} sc0 sc1")
    def wait_go(self, pre=False, sleep=0):
        a = self.a; L = self.lab("Lgo"); E = self.lab("Lgox")
        if pre: a(f"v_cmp_eq_u32 vcc, 0, v127\ns_cbranch_vccz {E}")
        a(f"v_mov_b32 v126, 0\ns_mov_b32 s49, 0\n{L}:")
        if sleep: a(f"s_sleep {sleep}")
        a(f"global_load_dword v127, v126, {sr(DBG,2)} sc0 sc1\ns_waitcnt vmcnt(0)")
        a(f"v_cmp_eq_u32 vcc, 0, v127\ns_add_u32 s49, s49, 1\ns_cmp_gt_u32 s49, 0x100000\ns_cbranch_scc1 {E}\ns_cbranch_vccnz {L}\n{E}:")
    def cnt_init(self):
        self.a(f"v_mov_b32 v126, {LCNT}\nv_mov_b32 v127, 0\nds_write_b32 v126, v127")
    def publish(self, sflag):
        a = self.a; L = self.lab("Lpub")
        self.wait_go(True)
        a(f"v_mov_b32 v126, {LCNT}\nv_mov_b32 v127, 1\ns_mov_b64 exec, 1\nds_add_rtn_u32 v126, v126, v127")
        a(f"s_lshl_b32 s49, s{sflag}, 7\ns_add_u32 s49, s49, {FLAGOFF}\ns_waitcnt lgkmcnt(0)\nv_cmp_eq_u32 vcc, 7, v126\nv_mov_b32 v126, s49\ns_cbranch_vccz {L}")
        a(f"global_store_dword v126, v127, {sr(WS,2)} sc0 sc1\n{L}:\ns_mov_b64 exec, -1")
    def poll(self, sfirst, nflags, need_go):
        a = self.a; L = self.lab("Lpoll"); E = self.lab("Lpollx")
        a(f"s_cmp_lg_u32 s{S_WAVE}, 0\ns_cbranch_scc1 {E}")
        if need_go: self.wait_go()
        a(f"v_and_b32 v12, {nflags-1}, v1\nv_add_u32 v12, s{sfirst}, v12\nv_lshlrev_b32 v12, 7, v12\nv_add_u32 v12, {FLAGOFF}, v12\ns_mov_b32 s49, 0")
        a(f"{L}:\nglobal_load_dword v13, v12, {sr(WS,2)} sc0 sc1\ns_waitcnt vmcnt(0)")
        a(f"v_cmp_ne_u32 vcc, 1, v13\ns_add_u32 s49, s49, 1\ns_cmp_gt_u32 s49, 0x100000\ns_cbranch_scc1 {E}\ns_cbranch_vccnz {L}\n{E}:\ns_barrier")

    def a_p1_loads(self):
        a = self.a
        nt = self.opt.get("kv_nt", "nt")
        a(f"s_lshr_b32 s48, s{S_J}, 4\ns_and_b32 s49, s{S_J}, 15\ns_lshl_b32 s50, s49, 3\ns_add_u32 s50, s50, s{S_WAVE}")
        a(f"s_mul_i32 s51, s50, {16*1152}\ns_lshl_b32 s52, s48, 7\ns_add_u32 s51, s51, s52\ns_movk_i32 s54, 4608")
        a("v_lshrrev_b32 v2, 5, v1\nv_and_b32 v7, 31, v1\nv_mul_u32_u24 v4, 9216, v2\nv_lshl_add_u32 v4, v7, 2, v4\nv_add_u32 v4, s51, v4\nv_add_u32 v5, 0xfffff280, v4")
        a("s_lshl_b32 s52, s48, 9\nv_lshlrev_b32 v6, 4, v7\nv_add_u32 v6, s52, v6")
        a(f"s_mov_b32 s{SRD_K+2}, 2359296\ns_mov_b32 s{SRD_K+3}, 0x20000\ns_mov_b32 s{SRD_V+2}, s{SRD_K+2}\ns_mov_b32 s{SRD_V+3}, s{SRD_K+3}\ns_waitcnt lgkmcnt(0)")
        a(f"s_mov_b64 {sr(SRD_K,2)}, {sr(K,2)}\ns_mov_b64 {sr(SRD_V,2)}, {sr(V,2)}")
        a(f"global_load_dwordx4 v[128:131], v6, {sr(SH,2)}")
        for i in range(3):
            a(f"buffer_load_dword v{132+i}, v5, {sr(SRD_K,4)}, 0 offen offset:{1152*i} {nt}")
        for t in range(8):
            so = "0" if t < 4 else "s54"
            a(f"buffer_load_dword v{135+t}, v4, {sr(SRD_K,4)}, {so} offen offset:{1152*(t&3)} {nt}")
            a(f"buffer_load_dword v{143+t}, v4, {sr(SRD_V,4)}, {so} offen offset:{1152*(t&3)} {nt}")
        a(f"s_lshl_b32 s52, s48, 18\ns_lshl_b32 s50, s50, 8\ns_add_u32 s52, s52, s50\nv_lshrrev_b32 v6, 2, v7\nv_lshlrev_b32 v6, 15, v6")
        a("v_and_b32 v7, 3, v7\nv_lshlrev_b32 v7, 4, v7\nv_lshl_add_u32 v7, v2, 6, v7\nv_add3_u32 v120, v6, v7, s52")
    def a_h_addr(self):
        a = self.a
        a(f"s_lshr_b32 s50, s{S_J}, 1\ns_lshl_b32 s50, s50, 3\ns_add_u32 s50, s50, s{S_WAVE}")
        a(f"s_lshl_b32 s51, s50, 12\ns_add_u32 s44, s{H}, s51\ns_addc_u32 s45, s{H+1}, 0\nv_lshlrev_b32 v122, 4, v1")
    def a_h_loads(self):
        a = self.a
        nt = self.opt.get("h_nt", "nt")
        for p in range(4):
            a(f"global_load_dwordx4 {vr(32+6*p,4)}, v122, s[44:45] offset:{1024*p} {nt}")
        a("s_load_dwordx2 s[66:67], s[44:45], 1024\ns_load_dwordx2 s[68:69], s[44:45], 2048\ns_load_dwordx2 s[70:71], s[44:45], 3072")
        return 4
    def a_setup(self):
        a = self.a
        a(f"s_and_b32 s52, s50, -2\ns_lshl_b32 s52, s52, 1\ns_load_dword s53, {sr(DD,2)}, s52")
        a(f"s_mul_i32 s55, s{S_WAVE}, {CS}\nv_and_b32 v123, 48, v122")
        self.srd(SRD_WS, WS, WSBYTES)
        a("v_lshrrev_b32 v11, 2, v1\nv_lshlrev_b32 v121, 8, v11\nv_add3_u32 v121, v121, v123, s55\nv_and_b32 v11, 1, v11\nv_lshlrev_b32 v11, 6, v11\nv_sub_u32 v119, v121, v11\nv_add_u32 v121, v121, v11")
        a(f"v_min_u32 v11, {29*16}, v122\nv_add_u32 v11, s55, v11")
        for i in range(16, 32): a(f"v_mov_b32 v{i}, 0")
        a(f"ds_write_b128 v11, v[16:19] offset:{KVL+4096}")
        a("v_min_u32 v118, 64, v122\nv_add_u32 v118, s55, v118")
        a("v_and_b32 v2, 15, v1\nv_lshrrev_b32 v3, 4, v1")
        a("v_lshrrev_b32 v4, 2, v2\nv_lshl_add_u32 v4, v3, 1, v4\nv_add_u32 v5, 5, v4\nv_add_u32 v4, 4, v4\nv_and_b32 v11, 3, v2")
        for r in (4, 5):
            a(f"v_lshrrev_b32 v12, 3, v{r}\nv_and_b32 v{r}, 7, v{r}\nv_lshlrev_b32 v{r}, 3, v{r}\nv_lshl_add_u32 v{r}, v12, 8, v{r}\nv_xor_b32 v12, v12, v11\nv_lshl_add_u32 v{r}, v12, 6, v{r}\nv_xor_b32 v{80+r}, 64, v{r}\nv_add_u32 v{r}, s55, v{r}\nv_add_u32 v{80+r}, s55, v{80+r}")
        a(f"v_sub_u32 v6, 15, v2\nv_lshlrev_b32 v6, 5, v6\nv_lshl_add_u32 v6, v3, 4, v6\nv_add_u32 v6, s55, v6\nv_add_u32 v6, {KVL}, v6")
        a(f"v_lshl_add_u32 v11, v3, 3, v2\nv_lshlrev_b32 v124, 1, v11\nv_add_u32 v124, s55, v124")
        a(f"s_lshr_b32 s48, s{S_J}, 1\ns_lshl_b32 s60, s48, 15\ns_add_u32 s61, s60, 8192\ns_add_u32 s62, s60, 16384\ns_add_u32 s63, s60, 24576\nv_lshlrev_b32 v7, 4, v0")
        a(f"v_and_b32 v11, 3, v0\nv_bfe_u32 v12, v0, 3, 1\nv_lshl_add_u32 v11, v11, 1, v12\nv_mul_u32_u24 v13, {CS}, v11")
        a(f"v_lshrrev_b32 v11, 4, v0\nv_bfe_u32 v12, v0, 2, 1\nv_lshl_add_u32 v11, v11, 1, v12\nv_sub_u32 v11, 63, v11\nv_lshl_add_u32 v13, v11, 4, v13\nv_add_u32 v13, {KVL}, v13")
        a(f"s_lshr_b32 s49, s{S_WAVE}, 1\ns_cmp_ge_u32 s49, 2\ns_cselect_b32 s64, 4, 0\ns_bitcmp1_b32 s{S_J}, 0\ns_cselect_b32 s64, 2, s64\ns_add_u32 s64, s64, s49")
        a(f"s_lshl_b32 s64, s64, 1\ns_and_b32 s52, s{S_WAVE}, 1\ns_add_u32 s64, s64, s52\ns_lshl_b32 s64, s64, 7\nv_add_u32 v11, s64, v1")
        a("s_lshl_b32 s48, s48, 4\nv_mul_u32_u24 v14, 1152, v11\nv_add_u32 v14, s48, v14\nv_mul_u32_u24 v15, 2304, v11\nv_add_u32 v15, s48, v15")
        a("v_mul_u32_u24 v8, 192, v3\nv_lshl_add_u32 v8, v2, 3, v8\nv_add_u32 v8, s55, v8")
        a(f"v_bfe_u32 v11, v1, 2, 2\nv_mul_u32_u24 v9, {CS}, v11\nv_and_b32 v11, 3, v1\nv_mul_u32_u24 v11, 192, v11\nv_lshl_add_u32 v11, v3, 3, v11")
        a(f"s_mul_i32 s49, s49, 768\ns_lshl_b32 s52, s52, 6\ns_add_u32 s49, s49, s52\nv_add3_u32 v9, v9, v11, s49\nv_add_u32 v10, {4*CS}, v9")
        a(f"s_and_b32 s48, s{S_J}, -16\nv_add_u32 v125, s48, v2\nv_lshlrev_b32 v125, 7, v125\nv_add_u32 v125, {FLAGOFF}, v125")
    def a_dtile(self):
        a = self.a
        a("v_lshl_add_u32 v11, v3, 3, v2")
        a("s_bitcmp1_b32 s50, 0\ns_cselect_b32 s52, 16, 0\ns_lshr_b32 s53, s53, s52\ns_and_b32 s53, s53, 0xffff")
        a("v_sub_u32 v11, 15, v11\nv_and_b32 v12, 1, v11\nv_lshlrev_b32 v12, 4, v12\nv_lshlrev_b32 v12, v12, s53\nv_ashrrev_i32 v11, 1, v11")
        for i in range(4):
            a(f"v_cmp_eq_u32 vcc, {i}, v11\nv_cndmask_b32 v{92+i}, 0, v12, vcc")
    def a_p1_compute(self, nh, hpos):
        a = self.a
        W, KF, VF, U, O = 152, 160, 182, 184, 200
        def unpack(dst, src):
            a(f"v_lshlrev_b32 v{dst}, 16, v{src}\nv_and_b32 v{dst+1}, 0xffff0000, v{src}")
        a(f"s_waitcnt vmcnt({16+nh})")
        if hpos == -1: nh += self.a_h_loads()
        a(f"v_lshlrev_b32 v{W}, 16, v128\nv_lshlrev_b32 v{W+1}, 16, v130\nv_and_b32 v{W+2}, 0xffff0000, v128\nv_and_b32 v{W+3}, 0xffff0000, v130")
        a(f"v_lshlrev_b32 v{W+4}, 16, v129\nv_lshlrev_b32 v{W+5}, 16, v131\nv_and_b32 v{W+6}, 0xffff0000, v129\nv_and_b32 v{W+7}, 0xffff0000, v131")
        for i in range(3): unpack(KF + 2 * i, 132 + i)
        for t in range(8):
            u = U + 2 * t
            a(f"v_pk_mul_f32 {vr(u,2)}, {vr(W+6,2)}, {vr(KF+2*t,2)}")
            a(f"v_pk_fma_f32 {vr(u,2)}, {vr(W+4,2)}, {vr(KF+2*t+2,2)}, {vr(u,2)}")
            a(f"v_pk_fma_f32 {vr(u,2)}, {vr(W+2,2)}, {vr(KF+2*t+4,2)}, {vr(u,2)}")
            a(f"s_waitcnt vmcnt({2*(7-t)+nh})")
            if hpos == t: nh += self.a_h_loads()
            unpack(KF + 2 * t + 6, 135 + t)
            unpack(VF, 143 + t)
            a(f"v_pk_fma_f32 {vr(u,2)}, {vr(W,2)}, {vr(KF+2*t+6,2)}, {vr(u,2)}")
            a(f"v_pk_mul_f32 {vr(u,2)}, {vr(u,2)}, {vr(VF,2)}")
            if t & 1:
                d = 3 - (t >> 1)
                a(f"v_cvt_pk_bf16_f32 v{O+d}, v{u}, v{u-2}\nv_cvt_pk_bf16_f32 v{O+4+d}, v{u+1}, v{u-1}")
        a(f"global_store_dwordx4 v120, {vr(O,4)}, {sr(WS,2)} sc1\nglobal_store_dwordx4 v120, {vr(O+4,4)}, {sr(WS,2)} offset:128 sc1")
        self.go_preload()
    def a_hprep_pass(self, p):
        a = self.a
        w = 32 + 6 * p
        T = 56 + 12 * (p & 1)
        if p < 3: a(f"v_mov_b32 v{w+4}, s{66+2*p}\nv_mov_b32 v{w+5}, s{67+2*p}")
        a(f"v_mov_b32_dpp v{w+4}, v{w} wave_shl:1 row_mask:0xf bank_mask:0xf\nv_mov_b32_dpp v{w+5}, v{w+1} wave_shl:1 row_mask:0xf bank_mask:0xf")
        if p == 0: a(f"ds_write_b128 v118, {vr(w,4)} offset:{KVL+4576}")
        a(f"ds_write_b128 v119, {vr(w+2,4)} offset:{4096*p+192}")
        for i in range(4): a(f"v_mov_b32 v{T+i}, v{w+1+i}")
        a(f"ds_write_b128 v119, {vr(T,4)} offset:{4096*p+64}")
        for i in range(4): a(f"v_alignbit_b32 v{T+4+i}, v{w+i+1}, v{w+i}, 16")
        a(f"ds_write_b128 v121, {vr(T+4,4)} offset:{4096*p}")
        for i in range(3): a(f"v_mov_b32 v{T+8+i}, v{T+5+i}")
        a(f"v_alignbit_b32 v{T+11}, v{w+5}, v{w+4}, 16")
        a(f"ds_write_b128 v121, {vr(T+8,4)} offset:{4096*p+128}")
    def a_read_tile(self, dst, n):
        r = 4 if (n - 1) % 2 == 0 else 84
        self.a(f"ds_read_b64 {vr(dst,2)}, v{r} offset:{(n-1)*256}\nds_read_b64 {vr(dst+2,2)}, v{r+1} offset:{(n-1)*256}")
    def a_resident(self, js):
        for j in js:
            for rho in range(8):
                self.a_read_tile(128 + 32 * (j - 4) + 4 * rho, 8 * j + rho)
    def wave_poll(self, vaddr, between):
        a = self.a; L = self.lab("Lp"); E = self.lab("Lpx")
        between()
        a(f"s_cmp_lg_u32 s{S_WAVE}, 0\ns_cbranch_scc1 {E}")
        a(f"s_mov_b32 s49, 0\n{L}:\nglobal_load_dword v127, v{vaddr}, {sr(WS,2)} sc1\ns_add_u32 s49, s49, 1\ns_cmp_gt_u32 s49, 0x100000\ns_waitcnt vmcnt(0)")
        a(f"v_cmp_ne_u32 vcc, 1, v127\ns_cbranch_scc1 {E}\ns_cbranch_vccnz {L}\n{E}:\ns_waitcnt lgkmcnt(0)\ns_barrier")
    def a_kv_load(self, part, between):
        a = self.a
        n = 4 if part == 0 else 3
        for i in range(n):
            a(f"buffer_load_dwordx4 {vr(100+4*i,4)}, v7, {sr(SRD_WS,4)}, s{60+i} offen sc1")
        between()
        for i in range(n):
            a(f"s_waitcnt vmcnt({n-1-i})\nds_write_b128 v13, {vr(100+4*i,4)} offset:{3072-1024*i}")
        a("s_waitcnt lgkmcnt(0)\ns_barrier")
        a(f"global_load_dwordx4 v[96:99], v14, {sr(Q,2)}\nv_add_u32 v14, {64*1152}, v14\nglobal_load_dwordx4 v[100:103], v14, {sr(Q,2)}")
    def tiles(self, part): return [0, 1, 6, 7] if part == 0 else [2, 3, 4, 5]
    def a_conv(self, part):
        a = self.a
        tiles = self.tiles(part)
        acc = {t: 16 + 4 * i for i, t in enumerate(tiles)}
        if part == 0:
            order = [(4,2),(5,2),(5,1),(6,1),(6,0),(7,0),(0,1),(0,0),(1,0),(0,7),(0,6),(1,6),(1,5),(2,5),(2,4),(3,4),(3,3),(4,3)]
        else:
            order = [(0,5),(0,4),(0,3),(0,2),(1,4),(1,3),(1,2),(1,1),(2,3),(2,2),(2,1),(2,0),(3,2),(3,1),(3,0),(4,1),(4,0),(5,0)]
        assert all((j + m) in acc for j, m in order) and len(set(order)) == 18
        issued = 0
        done = 0
        ready = {}
        def rdB(m, rho):
            nonlocal issued
            if self.opt.get("x_nob") and rho > 0: return
            a(f"ds_read_b128 {vr(32+4*m,4)}, v6 offset:{3552-512*m+32*(2*rho+1)}")
            issued += 1; ready[("B", m)] = issued
        def rdA(j, rho):
            nonlocal issued
            if self.opt.get("x_noa"): return
            self.a_read_tile(64 + 4 * j, 8 * j + rho)
            issued += 2; ready[("A", j)] = issued
        def wait(*ops):
            nonlocal done
            n = max(ready.get(o, 0) for o in ops)
            if n > done:
                if not self.opt.get("x_now"): a(f"s_waitcnt lgkmcnt({min(issued-n,15)})")
                done = max(n, issued - 15) if issued - n > 15 else n
        seen = []
        for j, m in order:
            if m not in seen: seen.append(m); rdB(m, 0)
        for rho in range(8):
            lastA = {j: i for i, (j, m) in enumerate(order)}
            lastB = {m: i for i, (j, m) in enumerate(order)}
            for i, (j, m) in enumerate(order):
                if j >= 4: ra = 128 + 32 * (j - 4) + 4 * rho; wait(("B", m))
                elif j == 0 and rho == 0: ra = 88; wait(("B", m))
                else: ra = 64 + 4 * j; wait(("A", j), ("B", m))
                c = acc[j + m]
                a(f"v_mfma_f32_16x16x32_bf16 {vr(c,4)}, {vr(ra,4)}, {vr(32+4*m,4)}, {vr(c,4)}")
                if j == 0 and rho == 0:
                    a(f"v_mfma_f32_16x16x32_bf16 {vr(c,4)}, v[92:95], {vr(32+4*m,4)}, {vr(c,4)}")
                if rho < 7:
                    if lastB[m] == i: rdB(m, rho + 1)
                    if lastA[j] == i and j < 4: rdA(j, rho + 1)
    def a_epilogue(self):
        a = self.a
        for i in range(4):
            c = 16 + 4 * i
            a(f"v_cvt_pk_bf16_f32 v{32+2*i}, v{c}, v{c+1}\nv_cvt_pk_bf16_f32 v{33+2*i}, v{c+2}, v{c+3}\nds_write_b64 v8, {vr(32+2*i,2)} offset:{768*i}")
        a("s_waitcnt lgkmcnt(0)\ns_barrier")
        for jj in range(2):
            a(f"ds_read_b64_tr_b16 {vr(40+4*jj,2)}, v9 offset:{32*jj}\nds_read_b64_tr_b16 {vr(42+4*jj,2)}, v10 offset:{32*jj}")
        a("s_waitcnt vmcnt(0)")
        for jj in range(2):
            for i in range(4):
                a(f"v_lshlrev_b32 v{48+8*jj+2*i}, 16, v{96+4*jj+i}\nv_and_b32 v{49+8*jj+2*i}, 0xffff0000, v{96+4*jj+i}")
        for jj in range(2):
            a(f"s_waitcnt lgkmcnt({2-2*jj})")
            for i in range(4):
                z = 40 + 4 * jj + i; t = 64 + 2 * i
                a(f"v_lshlrev_b32 v{t}, 16, v{z}\nv_and_b32 v{t+1}, 0xffff0000, v{z}\nv_pk_mul_f32 {vr(t,2)}, {vr(t,2)}, {vr(48+8*jj+2*i,2)}\nv_cvt_pk_bf16_f32 v{72+4*jj+i}, v{t}, v{t+1}")
            a(f"global_store_dwordx4 v15, {vr(72+4*jj,4)}, {sr(OUT,2)} {self.opt.get('a_out','')}")
            if jj == 0: a(f"v_add_u32 v15, {64*2304}, v15")

    def trig_setup(self, sX, mul, mask, special, scale):
        a = self.a
        a(f"s_lshl_b32 s49, s{sX}, 3\nv_lshrrev_b32 v20, 1, v2\nv_add_u32 v20, s49, v20\nv_and_b32 v21, 1, v2\nv_cvt_f32_u32 v21, v21\nv_mul_f32 v21, {f32(-0.25)}, v21")
        a(f"v_lshl_add_u32 v22, s{sX}, 4, v2")
        if mul != 1: a(f"v_mul_u32_u24 v20, {mul}, v20\nv_and_b32 v20, {mask}, v20")
        a(f"v_cmp_eq_u32 vcc, 1, v22\nv_cndmask_b32 v20, v20, {special}, vcc\nv_cndmask_b32 v21, v21, 0, vcc".replace(f"v_cndmask_b32 v20, v20, {special}, vcc", f"v_cndmask_b32_e64 v20, v20, {special}, vcc").replace("v_cndmask_b32 v21, v21, 0, vcc", "v_cndmask_b32_e64 v21, v21, 0, vcc"))
        a(f"v_cvt_f32_u32 v20, v20\nv_mul_f32 v20, {f32(scale)}, v20")
    def b_x_loads(self):
        a = self.a
        nt = self.opt.get("x_nt", "nt")
        a(f"v_lshrrev_b32 v4, 4, v0\nv_and_b32 v5, 15, v0\nv_lshlrev_b32 v6, 6, v4\nv_add_u32 v6, s{S_J}, v6\nv_mul_u32_u24 v6, 1152, v6\nv_lshl_add_u32 v6, v5, 3, v6")
        a("s_waitcnt lgkmcnt(0)")
        for p in range(9):
            a(f"global_load_dwordx2 {vr(32+2*p,2)}, v6, {sr(X,2)} offset:{128*p} {nt}")
    def b_p1(self):
        a = self.a
        self.cnt_init()
        WA = 200
        a("v_lshrrev_b32 v7, 1, v5\nv_and_b32 v8, 15, v4\nv_xor_b32 v8, v8, v7\nv_lshlrev_b32 v8, 4, v8\nv_lshl_add_u32 v8, v7, 8, v8\nv_and_b32 v7, 1, v5\nv_lshl_add_u32 v8, v7, 3, v8\nv_lshrrev_b32 v7, 4, v4\nv_lshl_add_u32 v8, v7, 11, v8")
        a("v_lshlrev_b32 v7, 2, v5\nv_mul_u32_u24 v9, 57, v7\nv_lshrrev_b32 v9, 9, v9\nv_mul_u32_u24 v9, 9, v9\nv_sub_u32 v7, v7, v9")
        for s in range(9):
            a(f"v_add_u32 v9, {s}, v7\nv_subrev_u32 v10, 9, v9\nv_min_u32 v9, v9, v10\nv_lshl_add_u32 v{WA+s}, v9, 12, v8")
        a("v_and_b32 v2, 15, v1\nv_lshrrev_b32 v3, 4, v1")
        a(f"s_lshr_b32 s50, s{S_WAVE}, 1\ns_and_b32 s51, s{S_WAVE}, 1")
        self.trig_setup(50, 57, 63, 32, 1.0 / 64)
        a("v_lshlrev_b32 v22, 3, v3\nv_cvt_f32_u32 v22, v22\nv_fma_f32 v21, v20, v22, v21")
        a(f"v_mul_f32 v23, {f32(24.0)}, v20")
        for kk in range(2):
            for i in range(4):
                a(f"v_cos_f32 v24, v21\nv_add_f32 v21, v21, v20\nv_cos_f32 v25, v21\nv_add_f32 v21, v21, v20\nv_cvt_pk_bf16_f32 v{68+4*kk+i}, v24, v25")
            if kk == 0: a("v_add_f32 v21, v21, v23")
        self.trig_setup(51, 1, 0, 16, 1.0 / 32)
        a("v_lshlrev_b32 v22, 2, v3\nv_cvt_f32_u32 v22, v22\nv_fma_f32 v21, v20, v22, v21")
        a(f"v_mul_f32 v23, {f32(12.0)}, v20")
        for i in range(4):
            a(f"v_cos_f32 v24, v21\nv_add_f32 v21, v21, v20\nv_cos_f32 v25, v21\nv_add_f32 v21, v21, v20\nv_cvt_pk_bf16_f32 v{76+i}, v24, v25")
            if i == 1: a("v_add_f32 v21, v21, v23")
        a("s_lshl_b32 s49, s51, 11\nv_xor_b32 v10, v2, v3\nv_lshlrev_b32 v10, 4, v10\nv_lshl_add_u32 v10, v3, 8, v10\nv_add_u32 v10, s49, v10\nv_xor_b32 v11, 64, v10\nv_add_u32 v11, 1024, v11")
        a(f"v_lshl_add_u32 v12, s51, 4, v2\nv_mul_u32_u24 v12, 1288, v12\nv_add_u32 v12, {L2}, v12")
        a("s_lshr_b32 s49, s50, 1\ns_mul_i32 s49, s49, 320\ns_and_b32 s52, s50, 1\ns_lshl_b32 s52, s52, 3\ns_add_u32 s49, s49, s52")
        a("v_lshrrev_b32 v13, 1, v3\nv_mul_u32_u24 v13, 640, v13\nv_and_b32 v14, 1, v3\nv_lshl_add_u32 v13, v14, 2, v13\nv_add3_u32 v13, v13, v12, s49")
        a("s_lshl_b32 s49, s50, 3\ns_sub_u32 s49, 36, s49\nv_lshlrev_b32 v14, 1, v3\nv_sub_u32 v14, s49, v14\nv_mul_u32_u24 v9, 57, v14\nv_lshrrev_b32 v9, 9, v9\nv_mul_u32_u24 v9, 9, v9\nv_sub_u32 v14, v14, v9")
        for e in range(9):
            a(f"v_add_u32 v9, {e}, v14\nv_subrev_u32 v15, 9, v9\nv_min_u32 v9, v9, v15\nv_lshl_add_u32 v{116+e}, v9, 5, v13")
        a(f"v_lshrrev_b32 v14, 2, v1\nv_mul_u32_u24 v14, 1288, v14\nv_and_b32 v9, 3, v1\nv_mul_u32_u24 v15, 320, v9\ns_lshl_b32 s49, s50, 4\ns_add_u32 s49, s49, {L2}\nv_add3_u32 v14, v14, v15, s49")
        a(f"v_lshrrev_b32 v15, 2, v2\nv_lshl_add_u32 v15, s51, 2, v15\nv_mul_u32_u24 v15, {19*16384}, v15\nv_lshl_add_u32 v15, v3, 6, v15\nv_lshl_add_u32 v15, v9, 4, v15")
        a(f"s_lshl_b32 s49, s50, 14\ns_lshl_b32 s52, s{S_J}, 8\ns_add_u32 s49, s49, s52\ns_add_u32 s49, s49, {VOFF}\nv_add_u32 v15, s49, v15")
        c = lambda k: math.cos(2 * math.pi * k / 9); s_ = lambda k: math.sin(2 * math.pi * k / 9)
        CN = {"c1": c(1), "c2": c(2), "c4": c(4), "s1": s_(1), "s2": s_(2), "s3": s_(3), "s4": s_(4), "mh": -0.5}
        CR = {}
        for i, (k, v) in enumerate(CN.items()):
            CR[k] = sr(60 + 2 * i, 2)
            a(f"s_mov_b32 s{60+2*i}, {f32(v)}\ns_mov_b32 s{61+2*i}, {f32(v)}")
        a("v_mov_b32 v9, 0xffff")
        a("s_waitcnt vmcnt(0)")
        self.stamp(1)
        for s in range(9):
            a(f"v_bfi_b32 v{50+2*s}, v9, v{32+2*s}, v{32+2*((s-1)%9)}\nv_bfi_b32 v{51+2*s}, v9, v{33+2*((s-2)%9)}, v{33+2*((s-3)%9)}")
            a(f"ds_write_b64 v{WA+s}, {vr(50+2*s,2)}")
        a("s_waitcnt lgkmcnt(0)\ns_barrier")
        order = [1, 8, 2, 7, 4, 5, 3, 6, 0]
        for i, b in enumerate(order):
            a(f"ds_read_b128 {vr(128+8*i,4)}, v10 offset:{4096*b}\nds_read_b128 {vr(132+8*i,4)}, v11 offset:{4096*b}")
        for i, b in enumerate(order):
            a(f"s_waitcnt lgkmcnt({min(15, 17-2*i)})")
            a(f"v_mfma_f32_16x16x32_bf16 {vr(80+4*b,4)}, v[68:71], {vr(128+8*i,4)}, 0")
            a(f"s_waitcnt lgkmcnt({min(15, 16-2*i)})")
            a(f"v_mfma_f32_16x16x32_bf16 {vr(80+4*b,4)}, v[72:75], {vr(132+8*i,4)}, {vr(80+4*b,4)}")
        def P(r): return vr(r, 2)
        add = lambda d, x, y: a(f"v_pk_add_f32 {P(d)}, {P(x)}, {P(y)}")
        sub = lambda d, x, y: a(f"v_pk_add_f32 {P(d)}, {P(x)}, {P(y)} neg_lo:[0,1] neg_hi:[0,1]")
        def fma(d, x, k, y, nk=False, ny=False):
            m = ""
            if nk or ny: m = f" neg_lo:[0,{int(nk)},{int(ny)}] neg_hi:[0,{int(nk)},{int(ny)}]"
            a(f"v_pk_fma_f32 {P(d)}, {P(x)}, {CR[k]}, {P(y)}{m}")
        ZR = [[0] * 9, [0] * 9]
        gens = []
        for h in range(2):
            g = lambda b, h=h: 80 + 4 * b + 2 * h
            T = 128 + 44 * h
            a1, a2, a3, a4, b1, b2, b3, b4, t, u, w, p, q, C0, C1, C2, C3, C4, S1, S2, S3, S4 = [T + 2 * i for i in range(22)]
            gens.append((g, (a1, a2, a3, a4, b1, b2, b3, b4, t, u, w, p, q, C0, C1, C2, C3, C4, S1, S2, S3, S4)))
        def both(fn):
            for h in range(2): fn(gens[h][0], *gens[h][1])
        both(lambda g, a1, a2, a3, a4, b1, b2, b3, b4, *r: (add(a1, g(1), g(8)), sub(b1, g(1), g(8))))
        both(lambda g, a1, a2, a3, a4, b1, b2, b3, b4, *r: (add(a2, g(2), g(7)), sub(b2, g(2), g(7))))
        both(lambda g, a1, a2, a3, a4, b1, b2, b3, b4, *r: (add(a4, g(4), g(5)), sub(b4, g(4), g(5))))
        both(lambda g, a1, a2, a3, a4, b1, b2, b3, b4, *r: (add(a3, g(3), g(6)), sub(b3, g(3), g(6))))
        def body(g, a1, a2, a3, a4, b1, b2, b3, b4, t, u, w, p, q, C0, C1, C2, C3, C4, S1, S2, S3, S4):
            add(t, a1, a2); sub(p, a1, a4); sub(q, a2, a4); add(t, t, a4); add(u, g(0), a3); fma(w, a3, "mh", g(0))
            add(C0, u, t); fma(C3, t, "mh", u)
            fma(C1, p, "c1", w); fma(C2, p, "c2", w); fma(C4, p, "c4", w)
            fma(C1, q, "c2", C1); fma(C2, q, "c4", C2); fma(C4, q, "c1", C4)
            sub(S3, b1, b2); add(p, b1, b2); add(q, b2, b4); a(f"v_pk_mul_f32 {P(b3)}, {P(b3)}, {CR['s3']}"); add(S3, S3, b4)
            fma(S1, p, "s1", b3); fma(S2, p, "s2", b3, ny=True); fma(S4, p, "s4", b3)
            a(f"v_pk_mul_f32 {P(S3)}, {P(S3)}, {CR['s3']}")
            fma(S1, q, "s4", S1); fma(S2, q, "s1", S2, nk=True); fma(S4, q, "s2", S4, nk=True)
        both(body)
        Ls = self.lab("Lsp")
        r0 = gens[0][1]; Cs = r0[13:18]; Ss = [None] + list(r0[18:22])
        a(f"s_cmp_lg_u32 s50, 0\ns_cbranch_scc1 {Ls}\ns_mov_b64 exec, 0xffff")
        for e in range(9):
            k = e if e <= 4 else 9 - e
            src = "0" if e == 0 else (f"v{Ss[k]+1}" if e <= 4 else f"-v{Ss[k]+1}")
            m = (e + 4) % 9
            off = (m >> 2) * 320 + (36 + ((m >> 1) & 1)) * 8 + (m & 1) * 4
            a(f"v_cvt_pk_bf16_f32 v{16+e}, v{Cs[k]+1}, {src}\nds_write_b32 v12, v{16+e} offset:{off}")
        for k in range(5): a(f"v_mov_b32 v{Cs[k]+1}, 0")
        for k in range(1, 5): a(f"v_mov_b32 v{Ss[k]+1}, 0")
        a(f"s_mov_b64 exec, -1\n{Ls}:")
        for h in range(2):
            r = gens[h][1]; C = r[13:18]; S = [None] + list(r[18:22])
            ZR[h][0] = C[0]
            for k in range(1, 5):
                ZR[h][k] = 80 + 4 * k + 2 * h; ZR[h][9 - k] = 80 + 4 * (9 - k) + 2 * h
        def combo(h, e):
            if e == 0: return
            r = gens[h][1]; C = r[13:18]; S = [None] + list(r[18:22])
            k = e if e <= 4 else 9 - e
            ng = "neg_lo:[0,1]" if e <= 4 else "neg_hi:[0,1]"
            a(f"v_pk_add_f32 {P(ZR[h][e])}, {P(C[k])}, {P(S[k])} op_sel:[0,1] op_sel_hi:[1,0] {ng}")
        for e in range(9):
            combo(0, e); combo(1, (e + 1) % 9)
            z0, z1 = ZR[0][e], ZR[1][(e + 1) % 9]
            a(f"v_cvt_pk_bf16_f32 v{32+2*e}, v{z0}, v{z1}\nv_cvt_pk_bf16_f32 v{33+2*e}, v{z0+1}, v{z1+1}")
            a(f"ds_write2_b32 v{116+e}, v{32+2*e}, v{33+2*e} offset0:0 offset1:4")
        a("s_waitcnt lgkmcnt(0)\ns_barrier")
        self.go_preload()
        for r in range(5):
            for T in range(2):
                for h2 in range(2):
                    a(f"ds_read_b64_tr_b16 {vr(128+8*r+4*T+2*h2,2)}, v14 offset:{64*r+8*T+20608*h2}")
        sc = "sc1" if self.mode == "fused" else ""
        Le = self.lab("Lse")
        for r in range(5):
            a(f"s_waitcnt lgkmcnt({min(15, 18-4*r)})")
            a(f"v_mfma_f32_16x16x32_bf16 {vr(176+8*r,4)}, {vr(128+8*r,4)}, v[76:79], 0")
            a(f"s_waitcnt lgkmcnt({min(15, 16-4*r)})")
            a(f"v_mfma_f32_16x16x32_bf16 {vr(180+8*r,4)}, {vr(132+8*r,4)}, v[76:79], 0")
        for r in range(5):
            if r == 4: a(f"s_cmp_eq_u32 s50, 3\ns_cbranch_scc1 {Le}")
            for i in range(4): a(f"v_cvt_pk_bf16_f32 v{32+4*r+i}, v{176+8*r+2*i}, v{177+8*r+2*i}")
            a(f"global_store_dwordx4 v15, {vr(32+4*r,4)}, {sr(WS,2)} {sc}")
            if r < 4: a("v_add_u32 v15, 0x10000, v15")
        a(f"{Le}:")
    def b_p2_setup(self):
        a = self.a
        a("v_and_b32 v2, 15, v1\nv_lshrrev_b32 v3, 4, v1")
        a(f"s_mul_i32 s50, s{S_J}, 57\ns_lshr_b32 s50, s50, 9\ns_mul_i32 s51, s50, 9\ns_sub_u32 s51, s{S_J}, s51")
        a(f"s_lshr_b32 s52, s{S_WAVE}, 2\ns_lshl_b32 s53, s50, 1\ns_add_u32 s53, s53, s52")
        a("s_and_b32 s54, s53, 15\ns_cmp_eq_u32 s54, 0\ns_cselect_b32 s54, 0, -1")
        a(f"s_and_b32 s49, s{S_WAVE}, 3\ns_lshl_b32 s49, s49, 9\ns_add_u32 s55, s49, s53")
        a(f"v_lshl_add_u32 v20, v2, 5, s55\nv_cvt_f32_u32 v20, v20\nv_mul_f32 v20, {f32(1.0/2048)}, v20\nv_lshlrev_b32 v22, 3, v3\nv_cvt_f32_u32 v22, v22\nv_mul_f32 v21, v20, v22\nv_mul_f32 v23, {f32(24.0)}, v20")
        for kk in range(2):
            for i in range(4):
                d = 4 * kk + i
                a(f"v_cos_f32 v24, v21\nv_sin_f32 v26, v21\nv_add_f32 v21, v21, v20\nv_cos_f32 v25, v21\nv_sin_f32 v27, v21\nv_add_f32 v21, v21, v20")
                a(f"v_cvt_pk_bf16_f32 v{64+d}, v24, v25\nv_cvt_pk_bf16_f32 v{80+d}, v26, v27\nv_cvt_pk_bf16_f32 v{72+d}, -v26, -v27")
                a(f"v_and_b32 v{88+d}, s54, v{64+d}\nv_and_b32 v{72+d}, s54, v{72+d}")
            if kk == 0: a("v_add_f32 v21, v21, v23")
        a(f"s_and_b32 s49, s50, 7\ns_mul_i32 s49, s49, 19\ns_lshl_b32 s60, s51, 1\ns_add_u32 s60, s60, s49\ns_lshl_b32 s60, s60, 14\ns_add_u32 s60, s60, {VOFF}")
        a("s_add_u32 s61, s60, 8192\ns_add_u32 s62, s60, 16384\ns_add_u32 s63, s60, 24576")
        a(f"s_add_u32 s49, s49, 18\ns_lshl_b32 s64, s49, 14\ns_add_u32 s64, s64, {VOFF}\ns_lshr_b32 s49, s51, 2\ns_lshl_b32 s49, s49, 6\ns_add_u32 s64, s64, s49\ns_and_b32 s49, s51, 3\ns_lshl_b32 s49, s49, 2\ns_add_u32 s64, s64, s49")
        a("v_lshlrev_b32 v4, 4, v0")
        a("v_bfe_u32 v9, v0, 2, 6\nv_and_b32 v10, 3, v0\nv_lshlrev_b32 v5, 8, v9\nv_lshl_add_u32 v5, v10, 4, v5")
        def rho(dst, src, tmp):
            a(f"v_and_b32 v{dst}, 35, v{src}\nv_bfe_u32 v{tmp}, v{src}, 2, 1\nv_lshl_add_u32 v{dst}, v{tmp}, 4, v{dst}\nv_bfe_u32 v{tmp}, v{src}, 3, 2\nv_lshl_add_u32 v{dst}, v{tmp}, 2, v{dst}")
        rho(7, 9, 11)
        a(f"v_mul_u32_u24 v7, 544, v7\nv_lshl_add_u32 v7, v10, 3, v7\nv_add_u32 v7, {L3+512}, v7")
        a("v_lshrrev_b32 v9, 4, v0")
        rho(6, 9, 11)
        a(f"v_mul_u32_u24 v6, 544, v6\nv_lshl_add_u32 v6, v10, 5, v6\nv_bfe_u32 v11, v0, 3, 1\nv_lshl_add_u32 v6, v11, 7, v6\nv_bfe_u32 v11, v0, 2, 1\nv_lshl_add_u32 v6, v11, 4, v6\nv_add_u32 v6, {L3}, v6")
        a("s_lshl_b32 s49, s52, 1\ns_cmp_eq_u32 s53, 16\ns_cselect_b32 s49, 1, s49\ns_lshl_b32 s65, s49, 5\ns_lshl_b32 s49, s49, 3")
        a(f"v_lshrrev_b32 v9, 2, v1\nv_mul_u32_u24 v9, 544, v9\nv_add_u32 v9, {L3}, v9\nv_and_b32 v10, 3, v1\nv_lshl_add_u32 v8, v10, 3, v9\nv_add_u32 v8, s65, v8")
        a("v_add_u32 v9, s49, v9\nv_cmp_eq_u32 vcc, 3, v10")
        for comp in range(2):
            for cs in range(2):
                a(f"v_add_u32 v11, {8+256*comp+32*cs}, v8\nv_add_u32 v28, {512+8*cs}, v9\nv_cndmask_b32 v{16+2*comp+cs}, v11, v28, vcc")
        a(f"s_lshl_b32 s49, s{S_WAVE}, 12\nv_lshrrev_b32 v11, 1, v2\nv_add_u32 v11, v11, v3\nv_and_b32 v11, 3, v11\nv_lshlrev_b32 v11, 4, v11\nv_lshl_add_u32 v20, v2, 6, v11\nv_add_u32 v20, s49, v20")
        a("v_lshrrev_b32 v9, 2, v1\nv_lshrrev_b32 v11, 3, v1\nv_add_u32 v21, v11, v10\nv_and_b32 v21, 3, v21\nv_sub_u32 v22, v11, v10\nv_add_u32 v22, 3, v22\nv_and_b32 v22, 3, v22")
        a("v_lshlrev_b32 v11, 6, v9\nv_add_u32 v11, s49, v11\nv_lshl_add_u32 v21, v21, 4, v11\nv_lshl_add_u32 v22, v22, 4, v11")
        a(f"v_lshl_add_u32 v9, v9, 5, s55\nv_sub_u32 v11, 2048, v9\nv_and_b32 v11, 2047, v11\nv_lshlrev_b32 v10, 4, v10\nv_add_u32 v10, 1152, v10\nv_mad_u32_u24 v23, v9, s68, v10\nv_mad_u32_u24 v24, v11, s68, v10".replace("v_lshl_add_u32 v9, v9, 5, s55", "s_movk_i32 s68, 2304\nv_lshl_add_u32 v9, v9, 5, s55"))
        a("s_lshl_b32 s66, s51, 7\ns_sub_u32 s67, 1088, s66\nv_add_u32 v25, s67, v23\nv_add_u32 v26, s67, v24\nv_add_u32 v23, s66, v23\nv_add_u32 v24, s66, v24")
    def b_p2(self, endlab):
        a = self.a
        sc = "sc1" if self.mode == "fused" else ""
        for i in range(4):
            a(f"buffer_load_dwordx4 {vr(96+4*i,4)}, v4, {sr(SRD_WS,4)}, s{60+i} offen {sc}")
        a(f"buffer_load_dword v112, v5, {sr(SRD_WS,4)}, s64 offen {sc}")
        for i in range(4):
            a(f"s_waitcnt vmcnt({4-i})\nds_write_b128 v6, {vr(96+4*i,4)} offset:{(i&1)*17408+(i>>1)*256}")
        a("s_waitcnt vmcnt(0)\nds_write_b32 v7, v112\ns_waitcnt lgkmcnt(0)\ns_barrier")
        self.stamp(5)
        a(f"s_cmp_eq_u32 s53, 17\ns_cbranch_scc1 {endlab}")
        M = {(0, 0): 64, (0, 1): 72, (1, 0): 80, (1, 1): 88}
        ACC = {(0, 0): 32, (0, 1): 36, (0, 2): 40, (1, 0): 44, (1, 1): 48, (1, 2): 52}
        jobs = [(comp, cs, kk, T) for kk in range(2) for cs in range(2) for comp in range(2) for T in range(3)]
        D = 7
        def rd(i):
            comp, cs, kk, T = jobs[i]
            for h in range(2):
                if T < 2: a(f"ds_read_b64_tr_b16 {vr(128+4*i+2*h,2)}, v8 offset:{kk*17408+h*8704+comp*256+T*128+cs*32}")
                else: a(f"ds_read_b64_tr_b16 {vr(128+4*i+2*h,2)}, v{16+2*comp+cs} offset:{kk*17408+h*8704}")
        for i in range(D): rd(i)
        first = set()
        for i, (comp, cs, kk, T) in enumerate(jobs):
            rem = min(len(jobs), i + D) - i - 1
            a(f"s_waitcnt lgkmcnt({2*rem})")
            c = ACC[(comp, T)]
            src = vr(c, 4) if (comp, T) in first else "0"
            first.add((comp, T))
            a(f"v_mfma_f32_16x16x32_bf16 {vr(c,4)}, {vr(128+4*i,4)}, {vr(M[(comp,cs)]+4*kk,4)}, {src}")
            if i + D < len(jobs): rd(i + D)
        self.stamp(6)
        a("v_cmp_eq_u32 vcc, 3, v3\nv_cndmask_b32 v52, v52, v53, vcc")
        for i in range(0, 8, 2):
            a(f"v_pk_add_f32 {vr(96+i,2)}, {vr(32+i,2)}, {vr(44+i,2)} neg_lo:[0,1] neg_hi:[0,1]\nv_pk_add_f32 {vr(106+i,2)}, {vr(32+i,2)}, {vr(44+i,2)}")
        a("v_sub_f32 v104, v40, v52\nv_add_f32 v114, v40, v52")
        Dm, Dp = 96, 106
        for x, (b, rev) in enumerate(((Dm, 0), (Dp, 1), (Dp, 0), (Dm, 1))):
            for i in range(4):
                if rev: a(f"v_cvt_pk_bf16_f32 v{128+4*x+i}, v{b+8-2*i}, v{b+7-2*i}")
                else: a(f"v_cvt_pk_bf16_f32 v{128+4*x+i}, v{b+2*i}, v{b+2*i+1}")
            a(f"ds_write_b128 v20, {vr(128+4*x,4)} offset:{L4+1024*x}")
        a("s_waitcnt lgkmcnt(0)")
        for x in range(4):
            a(f"ds_read_b128 {vr(144+4*x,4)}, v{21+(x&1)} offset:{L4+1024*x}")
        so = self.opt.get("b_out", "")
        ad = (23, 25, 24, 26)
        for x in range(4):
            if x == 2: a(f"s_cmp_eq_u32 s54, 0\ns_cbranch_scc1 {endlab}")
            a(f"s_waitcnt lgkmcnt({3-x})\nglobal_store_dwordx4 v{ad[x]}, {vr(144+4*x,4)}, {sr(OUT,2)} {so}")

    def kd(self, kname):
        self.a(f""".section .rodata,"a"
.p2align 6
.amdhsa_kernel {kname}
.amdhsa_next_free_vgpr 256
.amdhsa_next_free_sgpr 102
.amdhsa_accum_offset 256
.amdhsa_group_segment_fixed_size 0
.amdhsa_kernarg_size 112
.amdhsa_user_sgpr_count 2
.amdhsa_user_sgpr_kernarg_segment_ptr 1
.amdhsa_system_sgpr_workgroup_id_x 1
.amdhsa_float_denorm_mode_32 3
.end_amdhsa_kernel
.text""")
    def a_p2_all(self, fin, npre):
        a = self.a
        LQ = self.lab("LAq"); LE = self.lab("LAe")
        a(f"s_bitcmp1_b32 s{S_J}, 0\ns_cbranch_scc1 {LQ}")
        for part in range(2):
            if part: a(f"{LQ}:")
            for p in range(npre, 4 - part): self.a_hprep_pass(p)
            self.stamp(3)
            def first():
                a(f"s_waitcnt lgkmcnt(0)")
                self.a_resident((7, 6) if part == 0 else (5,))
            def second():
                a(f"ds_read_b128 v[88:91], v124 offset:{KVL+4576-30}")
                self.a_resident((5, 4) if part == 0 else (4,))
                for j in (1, 2, 3): self.a_read_tile(64 + 4 * j, 8 * j)
            self.wave_poll(125, first)
            if not self.opt.get("det"): self.stamp(4)
            self.a_kv_load(part, second)
            if not self.opt.get("det"): self.stamp(5)
            self.a_conv(part)
            if part == 0: a(f"s_branch {LE}")
        a(f"{LE}:\ns_nop 7")
        if not self.opt.get("det"): self.stamp(6)
        self.a_epilogue()
        a(f"s_branch {fin}")
    def build(self):
        a = self.a
        hdr = open("cdna_kernels/" + NAME + ".s.ref").read().split("\n")
        head = [l for l in hdr if l.startswith(";") and "@launch" not in l and "Override" not in l and "grid=ceil" not in l][:15]
        cb = self.opt.get("codebytes", 16384)
        if True:
            kn = NAME + "_kernel"
            head += [f"; @launch grid=({NWG},1,1) block=(512,1,1) lds={LDS_BYTES}"]
            a('.amdgcn_target "amdgcn-amd-amdhsa--gfx950"\n.text')
            self.entry(kn, cb)
            self.a_p1_loads(); self.a_h_addr(); self.cnt_init()
            hpos = self.opt.get("hpos", -1)
            nh = 0
            a("s_waitcnt lgkmcnt(0)\ns_barrier")
            if hpos == "bar": nh = self.a_h_loads()
            self.a_setup()
            if self.opt.get("det"): self.stamp(4)
            if hpos == "setup": nh = self.a_h_loads()
            self.a_p1_compute(nh, hpos)
            self.stamp(1)
            a("s_waitcnt lgkmcnt(0)")
            self.a_dtile()
            npre = self.opt.get("npre", 2)
            if self.opt.get("det"):
                a("s_waitcnt vmcnt(3)"); self.stamp(5); a("s_waitcnt vmcnt(0)"); self.stamp(6)
            for p in range(npre):
                a(f"s_waitcnt vmcnt({3-p+3})"); self.a_hprep_pass(p)
            a("s_waitcnt vmcnt(0)")
            self.publish(S_J)
            self.stamp(2)
            self.a_p2_all("L_fin", npre)
            a("L_b1:"); self.b_p1()
            a("s_mov_b32 s78, 1\ns_branch L_b2go")
            a(f"L_b2:\ns_mov_b32 s78, 0\ns_cmp_ge_u32 s{S_J}, 81\ns_waitcnt lgkmcnt(0)\ns_cbranch_scc1 L_end")
            a("L_b2go:")
            self.stamp(2)
            self.srd(SRD_WS, WS, WSBYTES)
            self.b_p2_setup()
            a(f"s_cmp_eq_u32 s78, 0\ns_cbranch_scc1 L_b2q\ns_waitcnt vmcnt(0)\ns_add_u32 s48, s{S_J}, 144")
            self.publish(48)
            a(f"s_branch L_b2p\nL_b2q:\ns_cmp_lg_u32 s{S_WAVE}, 0\ns_cbranch_scc1 L_b2p")
            self.wait_go(False, 16)
            a("L_b2p:")
            self.stamp(3)
            a("s_movk_i32 s48, 144")
            self.poll(48, 64, False)
            self.stamp(4)
            self.b_p2("L_fin")
            a("L_fin:"); self.dump_stamps(0)
            if self.opt.get("spin"):
                a("s_waitcnt vmcnt(0)")
                a("s_memrealtime s[96:97]\ns_waitcnt lgkmcnt(0)\ns_mov_b32 s99, s96")
                a("L_sp1:\ns_memrealtime s[96:97]\ns_waitcnt lgkmcnt(0)\ns_sub_u32 s96, s96, s99\ns_cmp_lt_u32 s96, 500\ns_cbranch_scc1 L_sp1")
                if self.opt.get("spin") == 2: a("buffer_wbl2 sc1\ns_waitcnt vmcnt(0)")
                a("L_sp2:\ns_memrealtime s[96:97]\ns_waitcnt lgkmcnt(0)\ns_sub_u32 s96, s96, s99\ns_cmp_lt_u32 s96, 2000\ns_cbranch_scc1 L_sp2")
            if self.opt.get("amp") is not None:
                a("s_waitcnt vmcnt(0)")
                self.stamp(7)
                r = self.opt.get("amprole", "A")
                a("s_lshr_b32 s3, s2, 3\ns_sub_u32 s3, s3, 1\ns_cmp_lt_u32 s3, 18\n" + ("s_cbranch_scc0 L_end" if r == "A" else "s_cbranch_scc1 L_end"))
                if r != "A": a("s_cmp_lt_u32 s3, 26\ns_cbranch_scc0 L_end")
                a("s_sub_u32 s98, s98, s96\ns_lshl_b32 s98, s98, 3\ns_min_u32 s98, s98, 100000\ns_memrealtime s[96:97]\ns_waitcnt lgkmcnt(0)\ns_mov_b32 s99, s96")
                a("L_amp:\ns_memrealtime s[96:97]\ns_waitcnt lgkmcnt(0)\ns_sub_u32 s96, s96, s99\ns_cmp_lt_u32 s96, s98\ns_cbranch_scc1 L_amp")
            a("L_end:\ns_endpgm\n.fill 1024, 4, 0xbf800000"); self.kd(kn)
        if self.stamps:
            import json
            R = {"A0": [w for w in range(NWG) if (w >> 3 >= 16 and (w >> 3) % 2 == 0) or (w >> 3 < 8 and w % 8 == 0)],
                 "A1": [w for w in range(NWG) if (w >> 3 >= 16 and (w >> 3) % 2 == 1) or (w >> 3 < 8 and w % 8 == 1)],
                 "B1": [w for w in range(NWG) if 8 <= w >> 3 < 16],
                 "B2": [w for w in range(NWG) if w >> 3 < 8 and w % 8 >= 2 and 64 <= 61 + 6 * (w >> 3) + w % 8 < 81], "CL": [CLEANER]}
            head.append("; ROLES " + json.dumps(R))
        return "\n".join(head) + "\n" + a.text()

if __name__ == "__main__":
    import argparse
    ap = argparse.ArgumentParser()
    ap.add_argument("--mode", default="fused"); ap.add_argument("--stamps", action="store_true"); ap.add_argument("-o", default="/dev/stdout")
    ap.add_argument("--opt", nargs="*", default=[])
    args = ap.parse_args()
    opt = {}
    for o in args.opt:
        k, v = o.split("=", 1)
        opt[k] = int(v) if v.lstrip("-").isdigit() else v
    open(args.o, "w").write(G(args.mode, args.stamps, opt).build())
```

```python
import sys, math, struct, json
from asmlib import Asm, vr, sr

NAME = "concat_heads__ssm_conv_h3__spectral_fnet__prompt"
NWG = 256
VOFF = 0x240000
FLAGOFF = 0x500000
FLAG2 = 256 * 128
EPOCH = FLAGOFF + 2 * FLAG2
STAMPOFF = 0x600000
WSBYTES = 268435456
CS = 17200
KVL = 12544
O1 = 2016
L1, L2, L3, L4 = 0, 36864, 78080, 0
LCNT = 8 * CS
LDS_BYTES = 8 * CS + 16

def f32(x): return "0x%08x" % struct.unpack("<I", struct.pack("<f", x))[0]

S_WAVE, S_J, S_OCT, S_PART = 6, 7, 76, 77
Q, K, V, SH, H, DD, X, OUT, DBG, WS = 8, 10, 12, 14, 16, 18, 20, 30, 32, 34
SRD_K, SRD_V, SRD_WS = 36, 40, 56
TAG = 28
AR0, AR1, BR, ZW, TR0, TR1, KG, KL, QA, OA = 4, 6, 8, 9, 10, 11, 12, 13, 14, 15
ACC, SLOT, DT, DG, QR, RES = 16, 40, 88, 96, 100, 128
P1S, HW0, HW1, HG, DGW, DGR, FLA, T0, T1, T2 = 116, 117, 118, 119, 120, 121, 122, 123, 124, 125

class G:
    def __init__(self, stamps=False, opt=None):
        self.a = Asm(); self.stamps = stamps; self.opt = opt or {}
        self.nlab = 0
        self.clk = "s_memtime" if self.opt.get("cyc") else "s_memrealtime"
    def lab(self, p="L"):
        self.nlab += 1; return f"{p}_{self.nlab}"
    def bst(self, i, det):
        if bool(self.opt.get("bdet")) == det: self.stamp(i)
    def stamp(self, i):
        if self.stamps:
            self.a(f"{self.clk} s[{80+2*i}:{81+2*i}]\ns_waitcnt lgkmcnt(0)")
    def dump_stamps(self):
        a = self.a
        if not self.stamps: return
        a("s_waitcnt vmcnt(0)")
        self.stamp(7)
        for i in range(8): a(f"v_mov_b32 v{2+i}, s{80+2*i}")
        a(f"s_lshl_b32 s3, s2, 3\ns_add_u32 s3, s3, s{S_WAVE}\ns_lshl_b32 s3, s3, 5\ns_add_u32 s3, s3, {STAMPOFF}\nv_mov_b32 v10, s3\ns_mov_b64 exec, 1")
        a(f"global_store_dwordx4 v10, v[2:5], {sr(WS,2)}\nglobal_store_dwordx4 v10, v[6:9], {sr(WS,2)} offset:16")
    def srd(self, r, ptr, nbytes):
        self.a(f"s_mov_b64 {sr(r,2)}, {sr(ptr,2)}\ns_mov_b32 s{r+2}, {nbytes}\ns_mov_b32 s{r+3}, 0x20000")

    def entry(self, kname, codebytes):
        a = self.a
        a(f".globl {kname}\n.p2align 8\n.type {kname},@function\n{kname}:")
        a(f"s_load_dwordx16 s[8:23], s[0:1], 0\ns_load_dwordx2 s[30:31], s[0:1], 88\ns_load_dwordx4 s[32:35], s[0:1], 96")
        if self.stamps:
            for i in range(8): a(f"s_mov_b32 s{80+2*i}, 0")
            a(f"{self.clk} s[80:81]")
        a(f"s_lshr_b32 s3, s2, 3\ns_and_b32 s48, s2, 7\nv_lshrrev_b32 v2, 6, v0\nv_and_b32 v1, 63, v0\ns_cmp_ge_u32 s2, {NWG}\nv_readfirstlane_b32 s{S_WAVE}, v2\ns_cbranch_scc1 L_end")
        a(f"s_getpc_b64 s[4:5]\nL_pc:\nv_lshlrev_b32 v2, 7, v0\nv_min_u32 v2, L_end-L_pc, v2\nglobal_load_dword v255, v2, s[4:5] {self.opt.get('pf_nt', '')}")
        self.cnt_init()
        a(f"s_sub_u32 s{S_J}, s2, 32\ns_cmp_lt_u32 s{S_J}, 64\ns_cbranch_scc0 L_a0")
        if self.opt.get("only") == "A": a("s_branch L_end")
        self.b_x_loads()
        a("s_branch L_b1\nL_a0:\ns_cmp_lt_u32 s3, 4\ns_cbranch_scc0 L_a1\ns_cmp_ge_u32 s48, 5\ns_cbranch_scc1 L_misc")
        if self.opt.get("only") == "B": a("s_branch L_end")
        a(f"s_lshr_b32 s{S_PART}, s48, 1\ns_and_b32 s49, s48, 1\ns_lshl_b32 s49, s49, 2\ns_lshr_b32 s50, s48, 2\ns_lshl_b32 s50, s3, s50\ns_add_u32 s{S_OCT}, s49, s50\ns_add_u32 s{S_OCT}, s{S_OCT}, 64\ns_branch L_a2\nL_a1:")
        if self.opt.get("only") == "B": a("s_branch L_end")
        a(f"s_lshl_b32 s{S_OCT}, s48, 3\ns_sub_u32 s49, s3, 12\ns_and_b32 s{S_PART}, s49, 1\ns_lshr_b32 s49, s49, 1\ns_sub_u32 s50, s3, 28\ns_lshl_b32 s50, s50, 1")
        a(f"s_cmp_ge_u32 s3, 28\ns_cselect_b32 s49, s50, s49\ns_cselect_b32 s{S_PART}, 2, s{S_PART}\ns_add_u32 s{S_OCT}, s{S_OCT}, s49\nL_a2:")
        a(f"s_cmp_ge_u32 s3, 28\ns_cselect_b32 s49, 1, 4\ns_cselect_b32 s50, 100, -12\ns_lshl_b32 s{S_J}, s48, s49\ns_add_u32 s{S_J}, s{S_J}, s50\ns_add_u32 s{S_J}, s{S_J}, s3\ns_sub_u32 s78, s3, 12")
    def misc(self):
        a = self.a
        a(f"L_misc:\ns_waitcnt lgkmcnt(0)\ns_cmp_eq_u32 s48, 7\ns_cbranch_scc0 L_b2\ns_cmp_eq_u32 s3, 0\ns_cbranch_scc0 L_end")
        self.tag_load(); a("s_waitcnt lgkmcnt(0)"); self.tag_make()
        a(f"v_and_b32 v2, 255, v0\nv_and_b32 v3, 0xe7, v2\nv_cmp_eq_u32 vcc, 7, v3\nv_cndmask_b32_e64 v2, v2, 32, vcc\nv_lshlrev_b32 v2, 7, v2\nv_add_u32 v2, {FLAGOFF+FLAG2}, v2\ns_mov_b32 s49, 0")
        if self.opt.get("only"): a("s_mov_b32 s49, 0x3ff8")
        a(f"L_bump:\nglobal_load_dwordx2 v[4:5], v2, {sr(WS,2)} sc1\ns_add_u32 s49, s49, 1\ns_cmp_gt_u32 s49, 0x40000\ns_waitcnt vmcnt(0)\nv_cmp_ne_u64 vcc, {sr(TAG,2)}, v[4:5]\ns_cbranch_scc1 L_bumpx\ns_cbranch_vccz L_bumpx\ns_sleep 8\ns_branch L_bump".replace("0x40000", "0x4000" if self.opt.get("only") else "0x40000"))
        a(f"L_bumpx:\ns_cmp_lg_u32 s{S_WAVE}, 0\ns_barrier\ns_cbranch_scc1 L_fin\nv_mov_b32 v2, {EPOCH}\nv_mov_b32 v4, s{TAG}\nv_mov_b32 v5, s{TAG+1}\ns_mov_b64 exec, 1\nglobal_store_dwordx2 v2, v[4:5], {sr(WS,2)} sc1\ns_mov_b64 exec, -1\ns_branch L_fin")

    def tag_load(self):
        self.a(f"s_add_u32 s26, s{WS}, {EPOCH}\ns_addc_u32 s27, s{WS+1}, 0\ns_load_dwordx2 {sr(TAG,2)}, s[26:27], 0")
    def tag_make(self):
        self.a(f"s_mul_i32 s{TAG}, s{TAG}, 0x9e3779b1\ns_add_u32 s{TAG}, s{TAG}, 0x7f4a7c15\ns_mul_i32 s{TAG+1}, s{TAG+1}, 0x85ebca6d\ns_add_u32 s{TAG+1}, s{TAG+1}, 0x165667b1")
    def flag_store(self, local):
        a = self.a
        a(f"s_lshl_b32 s49, s2, 7\ns_add_u32 s49, s49, {FLAGOFF}\nv_mov_b32 v{T2}, s49\nv_mov_b32 v126, s{TAG}\nv_mov_b32 v127, s{TAG+1}")
        if local: a(f"global_store_dwordx2 v{T2}, v[126:127], {sr(WS,2)}")
        a(f"v_add_u32 v{T2}, {FLAG2}, v{T2}\nglobal_store_dwordx2 v{T2}, v[126:127], {sr(WS,2)} sc1")
    def cnt_init(self):
        self.a(f"v_mov_b32 v126, {LCNT}\nv_mov_b32 v127, 0\nds_write_b32 v126, v127")
    def arrive(self, L):
        a = self.a
        a(f"v_mov_b32 v126, {LCNT}\nv_mov_b32 v127, 1\ns_mov_b64 exec, 1\nds_add_rtn_u32 v126, v126, v127\ns_waitcnt lgkmcnt(0)\nv_cmp_eq_u32 vcc, 7, v126\ns_nop 0\ns_cbranch_vccz {L}")
    def poll(self, vaddr, two=False, every=False):
        a = self.a; L = self.lab("Lp"); E = self.lab("Lpx")
        if not every: a(f"s_cmp_lg_u32 s{S_WAVE}, 0\ns_cbranch_scc1 {E}")
        a(f"s_mov_b32 s49, 0\n{L}:")
        if two:
            a(f"s_and_b32 s52, s49, 15\ns_cmp_eq_u32 s52, 15\ns_cselect_b32 s52, {FLAG2}, s64\nbuffer_load_dwordx2 v[126:127], v{vaddr}, {sr(SRD_WS,4)}, s52 offen sc1")
        else:
            a(f"global_load_dwordx2 v[126:127], v{vaddr}, {sr(WS,2)} sc1")
        a(f"s_add_u32 s49, s49, 1\ns_cmp_gt_u32 s49, 0x100000\ns_waitcnt vmcnt(0)")
        a(f"v_cmp_ne_u64 vcc, {sr(TAG,2)}, v[126:127]\ns_cbranch_scc1 {E}\ns_cbranch_vccnz {L}\n{E}:")
        if not every: a("s_waitcnt lgkmcnt(0)\ns_barrier")

    def a_addr(self):
        a = self.a
        a(f"s_lshl_b32 s50, s{S_OCT}, 3\ns_add_u32 s50, s50, s{S_WAVE}\ns_lshl_b32 s51, s50, 12\nv_lshlrev_b32 v{HG}, 4, v1\nv_lshrrev_b32 v2, 5, v1")
        a(f"s_cmp_eq_u32 s{S_PART}, 2\ns_cselect_b32 s52, {32768-1536}, 0\nv_add_u32 v{QA}, s51, v{HG}\nv_mad_u32_u24 v{OA}, v2, s52, v{QA}\nv_add_u32 v{ZW}, s52, v{QA}")
        a(f"s_lshr_b32 s72, s{S_J}, 4\ns_and_b32 s49, s{S_J}, 15\ns_lshl_b32 s73, s49, 3\ns_add_u32 s73, s73, s{S_WAVE}")
        a(f"s_mul_i32 s74, s73, {16*1152}\ns_lshl_b32 s52, s72, 7\ns_add_u32 s74, s74, s52\ns_movk_i32 s54, 4608")
        a("v_and_b32 v7, 31, v1\nv_mul_u32_u24 v4, 9216, v2\nv_lshl_add_u32 v4, v7, 2, v4\nv_add_u32 v4, s74, v4\nv_add_u32 v5, 0xfffff280, v4")
        a("s_lshl_b32 s52, s72, 9\nv_lshlrev_b32 v6, 4, v7\nv_add_u32 v6, s52, v6")
        a(f"s_mov_b32 s{SRD_K+2}, 2359296\ns_mov_b32 s{SRD_K+3}, 0x20000\ns_mov_b32 s{SRD_V+2}, s{SRD_K+2}\ns_mov_b32 s{SRD_V+3}, s{SRD_K+3}\ns_waitcnt lgkmcnt(0)")
        a(f"s_mov_b64 {sr(SRD_K,2)}, {sr(K,2)}\ns_mov_b64 {sr(SRD_V,2)}, {sr(V,2)}")
    def a_h_load(self, p, late=False):
        self.a(f"global_load_dwordx4 {vr(SLOT+6*p,4)}, v{(QA,OA,ZW,QA)[p]}, {sr(H,2)} offset:{1024*p} {self.opt.get('hl_nt' if late else 'h_nt', 'nt')}")
    def a_kv_loads(self):
        a = self.a
        nt = self.opt.get("kv_nt", "nt")
        a(f"global_load_dwordx4 v[128:131], v6, {sr(SH,2)} {self.opt.get('sh_nt', '')}")
        for i in range(3):
            a(f"buffer_load_dword v{132+i}, v5, {sr(SRD_K,4)}, 0 offen offset:{1152*i} {self.opt.get('halo_nt', 'nt')}")
        for t in range(8):
            so = "0" if t < 4 else "s54"
            a(f"buffer_load_dword v{135+t}, v4, {sr(SRD_K,4)}, {so} offen offset:{1152*(t&3)} {self.opt.get('halo_nt', 'nt') if t >= 5 else nt}")
            a(f"buffer_load_dword v{143+t}, v4, {sr(SRD_V,4)}, {so} offen offset:{1152*(t&3)} {nt}")
    def a_setup0(self):
        a = self.a
        self.tag_load()
        a(f"s_and_b32 s52, s50, -2\ns_lshl_b32 s52, s52, 1\ns_load_dword s53, {sr(DD,2)}, s52\ns_cmp_eq_u32 s{S_PART}, 2\ns_cselect_b32 s51, 16, 0\ns_add_u32 s52, s52, s51\ns_load_dword s65, {sr(DD,2)}, s52")
        a(f"s_lshl_b32 s52, s72, 18\ns_lshl_b32 s49, s73, 8\ns_add_u32 s52, s52, s49\nv_bfe_u32 v{T1}, v1, 2, 3\nv_lshlrev_b32 v{T1}, 15, v{T1}\nv_and_b32 v{T2}, 48, v{HG}")
        a(f"v_lshl_add_u32 v{P1S}, v2, 6, v{T2}\nv_add3_u32 v{P1S}, v{P1S}, v{T1}, s52")
        a(f"s_mul_i32 s55, s{S_WAVE}, {CS}")
        a(f"v_lshrrev_b32 v{T1}, 2, v1\nv_lshlrev_b32 v{HW0}, 8, v{T1}\nv_add3_u32 v{HW0}, v{HW0}, v{T2}, s55\nv_and_b32 v{T1}, 1, v{T1}\nv_lshlrev_b32 v{T1}, 6, v{T1}\nv_sub_u32 v{HW1}, v{HW0}, v{T1}\nv_add_u32 v{HW0}, v{HW0}, v{T1}")
        if self.opt.get("awp", 1):
            a(f"s_lshr_b32 s52, s{S_WAVE}, 1\ns_sub_u32 s49, 3, s{S_PART}\ns_cmp_eq_u32 s{S_PART}, 2\ns_cselect_b32 s49, 5, s49\ns_cselect_b32 s52, 0, s52\ns_cselect_b32 s51, 0, 2\nv_min_u32 v{T0}, s49, v1\nv_lshlrev_b32 v{T0}, s51, v{T0}\nv_add_u32 v{T0}, s52, v{T0}")
        else:
            a(f"s_mul_i32 s52, s{S_PART}, 5\ns_sub_u32 s52, 15, s52\ns_cmp_eq_u32 s{S_PART}, 1\ns_addc_u32 s52, s52, 0\nv_min_u32 v{T0}, s52, v1")
        a(f"s_lshr_b32 s52, s{S_OCT}, 3\ns_add_u32 s52, s52, 96\nv_lshl_add_u32 v{FLA}, v{T0}, 3, s52")
        a(f"s_cmp_lt_u32 s{S_OCT}, 64\ns_cselect_b32 s64, 0, {FLAG2}\ns_cbranch_scc1 L_af\nv_and_b32 v{FLA}, 1, v{T0}\nv_lshrrev_b32 v{T0}, 1, v{T0}\nv_lshl_add_u32 v{FLA}, v{FLA}, 3, v{T0}\nv_add_u32 v{FLA}, 224, v{FLA}\nL_af:")
        a(f"v_lshlrev_b32 v{FLA}, 7, v{FLA}\nv_add_u32 v{FLA}, {FLAGOFF}, v{FLA}")
        a(f"global_load_dword v254, v{FLA}, {sr(WS,2)} {self.opt.get('fl_nt', 'sc1')}")
    def a_setup(self):
        a = self.a
        self.srd(SRD_WS, WS, WSBYTES)
        a(f"v_min_u32 v{T1}, {29*16}, v{HG}\nv_add_u32 v{T1}, s55, v{T1}")
        for i in range(ACC, ACC + 24): a(f"v_mov_b32 v{i}, 0")
        a(f"ds_write_b128 v{T1}, {vr(ACC,4)} offset:{KVL+4096}")
        a("v_and_b32 v2, 15, v1\nv_lshrrev_b32 v3, 4, v1")
        a(f"v_lshrrev_b32 v4, 2, v2\nv_lshl_add_u32 v4, v3, 1, v4\nv_add_u32 v5, 5, v4\nv_add_u32 v4, 4, v4\nv_and_b32 v{T2}, 3, v2")
        for r in (4, 5):
            a(f"v_lshrrev_b32 v{T0}, 3, v{r}\nv_and_b32 v{r}, 7, v{r}\nv_lshlrev_b32 v{r}, 3, v{r}\nv_lshl_add_u32 v{r}, v{T0}, 8, v{r}\nv_xor_b32 v{T0}, v{T0}, v{T2}\nv_lshl_add_u32 v{r}, v{T0}, 6, v{r}\nv_xor_b32 v{r+2}, 64, v{r}\nv_add_u32 v{r}, s55, v{r}\nv_add_u32 v{r+2}, s55, v{r+2}")
        a(f"s_add_u32 s49, s55, {KVL-O1}\nv_sub_u32 v{BR}, 15, v2\nv_lshlrev_b32 v{BR}, 5, v{BR}\nv_lshl_add_u32 v{BR}, v3, 4, v{BR}\nv_add_u32 v{BR}, s49, v{BR}")
        a(f"v_lshrrev_b32 v{T0}, 2, v2\nv_xor_b32 v{DGW}, 1, v{T0}\nv_lshlrev_b32 v{DGW}, 6, v{DGW}\nv_lshl_add_u32 v{DGW}, v{T2}, 3, v{DGW}\nv_add_u32 v{DGW}, s55, v{DGW}")
        a(f"v_sub_u32 v{DGR}, 3, v{T0}\nv_lshlrev_b32 v{DGR}, 4, v{DGR}\nv_cmp_eq_u32 s[68:69], 3, v{T2}")
        a(f"s_lshl_b32 s60, s{S_OCT}, 15\nv_lshlrev_b32 v{KG}, 4, v0")
        a(f"v_bfe_u32 v{T0}, v0, 3, 1\nv_lshl_add_u32 v{T0}, v{T2}, 1, v{T0}\nv_mul_u32_u24 v{KL}, {CS}, v{T0}")
        a(f"v_lshrrev_b32 v{T0}, 4, v0\nv_bfe_u32 v{T1}, v0, 2, 1\nv_lshl_add_u32 v{T0}, v{T0}, 1, v{T1}\nv_sub_u32 v{T0}, 63, v{T0}\nv_lshl_add_u32 v{KL}, v{T0}, 4, v{KL}\nv_add_u32 v{KL}, {KVL}, v{KL}")
    def a_row_m1(self, rd, row):
        a = self.a
        a(rd)
        a(f"v_lshlrev_b64 v[{DG+2*(row>0)}:{DG+1+2*(row>0)}], v{DGR}, s[66:67]\nv_cndmask_b32_e64 v{DG+2*(row>0)}, 0, v{DG+2*(row>0)}, s[68:69]\nv_cndmask_b32_e64 v{DG+1+2*(row>0)}, 0, v{DG+1+2*(row>0)}, s[68:69]\nds_write_b64 v{DGW}, v[{DG+2*(row>0)}:{DG+1+2*(row>0)}] offset:{256*row+32}")
    def a_setup_part(self, part):
        a = self.a
        a(f"s_lshl_b32 s48, s{S_OCT}, 4\nv_bfe_u32 v{T0}, v1, 2, 2\nv_mul_u32_u24 v{TR0}, {CS}, v{T0}\nv_and_b32 v{T1}, 3, v1")
        if part < 2:
            a("s_add_u32 s61, s60, 8192\ns_add_u32 s62, s60, 16384\ns_add_u32 s63, s60, 24576")
            a(f"s_lshl_b32 s49, s{S_WAVE}, 6\ns_add_u32 s49, s49, {256*(6 if part == 0 else 4)}\nv_add_u32 v{T0}, s49, v1")
            a(f"v_mul_u32_u24 v{QA}, 1152, v{T0}\nv_add_u32 v{QA}, s48, v{QA}\nv_mul_u32_u24 v{OA}, 2304, v{T0}\nv_add_u32 v{OA}, s48, v{OA}")
            a(f"v_mul_u32_u24 v{ZW}, 192, v3\nv_lshl_add_u32 v{ZW}, v2, 3, v{ZW}\nv_add_u32 v{ZW}, s55, v{ZW}")
            a(f"v_mul_u32_u24 v{T1}, 192, v{T1}\nv_lshl_add_u32 v{T1}, v3, 3, v{T1}\ns_lshr_b32 s49, s{S_WAVE}, 2\ns_mul_i32 s49, s49, 768\ns_and_b32 s52, s{S_WAVE}, 3\ns_lshl_b32 s52, s52, 5\ns_add_u32 s49, s49, s52")
        else:
            a(f"s_cmp_ge_u32 s{S_WAVE}, 4\ns_cselect_b32 s49, {32768-4096-8192}, 0\ns_cselect_b32 s63, {1536-O1}, 0\ns_add_u32 s61, s60, s49\ns_add_u32 s61, s61, 8192\ns_add_u32 s62, s60, {32768+4096}")
            a(f"s_lshl_b32 s49, s{S_WAVE}, 5\nv_lshrrev_b32 v{T0}, 1, v1\nv_add_u32 v{T0}, s49, v{T0}\nv_and_b32 v{T2}, 1, v1\nv_lshl_add_u32 v{T2}, v{T2}, 4, s48")
            a(f"v_mul_u32_u24 v{QA}, 1152, v{T0}\nv_add_u32 v{QA}, v{T2}, v{QA}\nv_mul_u32_u24 v{OA}, 2304, v{T0}\nv_add_u32 v{OA}, v{T2}, v{OA}")
            a(f"v_mul_u32_u24 v{ZW}, 320, v3\nv_lshl_add_u32 v{ZW}, v2, 4, v{ZW}\nv_add_u32 v{ZW}, s55, v{ZW}")
            a(f"v_and_b32 v{T0}, 1, v3\nv_lshlrev_b32 v{T0}, 1, v{T0}\nv_lshrrev_b32 v{T2}, 1, v{T1}\nv_add_u32 v{T0}, v{T0}, v{T2}\nv_mul_u32_u24 v{T0}, 320, v{T0}\nv_and_b32 v{T1}, 1, v{T1}\nv_lshl_add_u32 v{T1}, v{T1}, 3, v{T0}")
            a(f"v_lshrrev_b32 v{T0}, 1, v3\nv_lshl_add_u32 v{T1}, v{T0}, 4, v{T1}\ns_lshl_b32 s49, s{S_WAVE}, 5")
            a(f"v_min_u32 v{T0}, {29*16}, v{HG}\nv_add_u32 v{T0}, s55, v{T0}\nds_write_b128 v{T0}, {vr(ACC,4)} offset:{KVL+4096-O1}")
        a(f"v_add3_u32 v{TR0}, v{TR0}, v{T1}, s49\nv_add_u32 v{TR1}, {4*CS}, v{TR0}")
        a(f"s_bitcmp1_b32 s50, 0\ns_cselect_b32 s52, 16, 0\nv_lshl_add_u32 v{T0}, v3, 3, v2\nv_sub_u32 v{T0}, 15, v{T0}\nv_and_b32 v{T1}, 1, v{T0}\nv_lshlrev_b32 v{T1}, 4, v{T1}\nv_ashrrev_i32 v{T0}, 1, v{T0}")
        a(f"s_lshr_b32 s53, s53, s52\ns_and_b32 s53, s53, 0xffff\nv_lshlrev_b32 v{T2}, v{T1}, s53")
        if part == 2: a(f"s_lshr_b32 s65, s65, s52\ns_and_b32 s65, s65, 0xffff\nv_lshlrev_b32 v{T1}, v{T1}, s65")
        for i in range(4):
            a(f"v_cmp_eq_u32 vcc, {i}, v{T0}\nv_cndmask_b32 v{DT+i}, 0, v{T2}, vcc")
            if part == 2: a(f"v_cndmask_b32 v{DT+4+i}, 0, v{T1}, vcc")
    def a_p1_compute(self, nh):
        a = self.a
        W, KF, VF, U, O = 152, 160, 182, 184, 200
        def unpack(dst, src):
            a(f"v_lshlrev_b32 v{dst}, 16, v{src}\nv_and_b32 v{dst+1}, 0xffff0000, v{src}")
        a(f"s_waitcnt vmcnt({16+nh})")
        a(f"v_lshlrev_b32 v{W}, 16, v128\nv_lshlrev_b32 v{W+1}, 16, v130\nv_and_b32 v{W+2}, 0xffff0000, v128\nv_and_b32 v{W+3}, 0xffff0000, v130")
        a(f"v_lshlrev_b32 v{W+4}, 16, v129\nv_lshlrev_b32 v{W+5}, 16, v131\nv_and_b32 v{W+6}, 0xffff0000, v129\nv_and_b32 v{W+7}, 0xffff0000, v131")
        for i in range(3): unpack(KF + 2 * i, 132 + i)
        for t in range(8):
            u = U + 2 * t
            a(f"v_pk_mul_f32 {vr(u,2)}, {vr(W+6,2)}, {vr(KF+2*t,2)}")
            a(f"v_pk_fma_f32 {vr(u,2)}, {vr(W+4,2)}, {vr(KF+2*t+2,2)}, {vr(u,2)}")
            a(f"v_pk_fma_f32 {vr(u,2)}, {vr(W+2,2)}, {vr(KF+2*t+4,2)}, {vr(u,2)}")
            a(f"s_waitcnt vmcnt({2*(7-t)+nh})")
            unpack(KF + 2 * t + 6, 135 + t)
            unpack(VF, 143 + t)
            a(f"v_pk_fma_f32 {vr(u,2)}, {vr(W,2)}, {vr(KF+2*t+6,2)}, {vr(u,2)}")
            a(f"v_pk_mul_f32 {vr(u,2)}, {vr(u,2)}, {vr(VF,2)}")
            if t & 1:
                d = 3 - (t >> 1)
                a(f"v_cvt_pk_bf16_f32 v{O+d}, v{u}, v{u-2}\nv_cvt_pk_bf16_f32 v{O+4+d}, v{u+1}, v{u-1}")
        a(f"global_store_dwordx4 v{P1S}, {vr(O,4)}, {sr(WS,2)} sc1\nglobal_store_dwordx4 v{P1S}, {vr(O+4,4)}, {sr(WS,2)} offset:128 sc1")
    def a_hprep_pass(self, part, p, alt):
        a = self.a
        w = SLOT + 6 * p
        T = SLOT + 24 + 12 * alt
        top = p == (3 if part == 0 else 2)
        o = 256 + 4096 * p + (512 if part == 2 and p == 2 else 0)
        if not top: a(f"v_readfirstlane_b32 s66, v{w+6}\nv_readfirstlane_b32 s67, v{w+7}")
        if part == 2 and p == 1:
            a(f"v_and_b32 v{T0}, 512, v{HG}\nv_add_u32 v{HW0}, v{HW0}, v{T0}\nv_add_u32 v{HW1}, v{HW1}, v{T0}")
        for i in range(3): a(f"v_mov_b32 v{T+i}, v{w+1+i}")
        if not top: a(f"v_mov_b32 v{w+4}, s66\nv_mov_b32 v{w+5}, s67")
        for i in range(3): a(f"v_alignbit_b32 v{T+4+i}, v{w+i+1}, v{w+i}, 16")
        a(f"v_mov_b32_dpp v{w+4}, v{w} wave_shl:1 row_mask:0xf bank_mask:0xf\nv_mov_b32_dpp v{w+5}, v{w+1} wave_shl:1 row_mask:0xf bank_mask:0xf")
        a(f"ds_write_b128 v{HW1}, {vr(w+2,4)} offset:{o+192}")
        a(f"v_mov_b32 v{T+3}, v{w+4}")
        a(f"ds_write_b128 v{HW1}, {vr(T,4)} offset:{o+64}")
        a(f"v_alignbit_b32 v{T+7}, v{w+4}, v{w+3}, 16")
        a(f"ds_write_b128 v{HW0}, {vr(T+4,4)} offset:{o}")
        for i in range(3): a(f"v_mov_b32 v{T+8+i}, v{T+5+i}")
        a(f"v_alignbit_b32 v{T+11}, v{w+5}, v{w+4}, 16")
        a(f"ds_write_b128 v{HW0}, {vr(T+8,4)} offset:{o+128}")
        if p == 0: self.a_row_m1(f"v_readfirstlane_b32 s66, v{w}\nv_readfirstlane_b32 s67, v{w+1}", 0)
        if part == 2 and p == 1: self.a_row_m1(f"v_readlane_b32 s66, v{w}, 32\nv_readlane_b32 s67, v{w+1}, 32", 26)
    def rd_a(self, dst, o, j, rho):
        n = 8 * j + rho + 26 * o
        r = AR0 if (n - 1) % 2 == 0 else AR1
        self.a(f"ds_read_b64 {vr(dst,2)}, v{r} offset:{n*256}\nds_read_b64 {vr(dst+2,2)}, v{r+1} offset:{n*256}")
        return 2
    def rd_b(self, dst, o, m, rho):
        self.a(f"ds_read_b128 {vr(dst,4)}, v{BR} offset:{O1*(1-o)+3552-512*m+32*(2*rho+1)}")
        return 1
    def plan(self, part):
        if part == 0:
            passes = [[(0,j,m) for j, m in [(4,2),(5,2),(5,1),(6,1),(6,0),(7,0),(0,7),(0,6),(1,6),(1,5),(2,5),(2,4),(3,4),(3,3),(4,3)]]]
            res = [(0,7),(0,6),(0,5),(0,4)]; tiles = [(0,6),(0,7)]
        elif part == 1:
            passes = [[(0,j,3-j) for j in range(4)],
                      [(0,j,m) for j, m in [(0,5),(0,4),(1,4),(1,3),(2,3),(2,2),(3,2),(3,1),(4,1),(4,0),(5,0)]]]
            res = [(0,0),(0,1),(0,2),(0,3)]; tiles = [(0,4),(0,5),(0,3)]
        else:
            one = [(0,2),(0,1),(1,1),(0,0),(1,0),(2,0)]
            passes = [[(o,j,m) for o in range(2) for j, m in one]]
            res = [(0,0),(1,0),(0,1),(0,2)]; tiles = [(o,t) for t in range(3) for o in range(2)]
        return passes, {r: RES + 32 * i for i, r in enumerate(res)}, {t: ACC + 4 * i for i, t in enumerate(tiles)}
    def a_resident(self, part, which, late=False):
        passes, res, acc = self.plan(part)
        for i, ((o, j), base) in enumerate(res.items()):
            if i in which:
                for rho in range(8):
                    self.rd_a(base + 4 * rho, o, j, rho)
    def a_stage_kv(self, part, between):
        a = self.a
        n = 4 if part == 0 else 3
        for i in range(n):
            a(f"buffer_load_dwordx4 {vr(QR+4*i,4)}, v{KG}, {sr(SRD_WS,4)}, s{60+i} offen sc1")
        between()
        if part == 2: a(f"v_add_u32 v{T0}, s63, v{KL}")
        for i in range(n):
            if part < 2: ad, off = KL, 3072 - 1024 * i
            else: ad, off = ((KL, 3072), (T0, 2048), (KL, 2560 - O1))[i]
            a(f"s_waitcnt vmcnt({n-1-i})\nds_write_b128 v{ad}, {vr(QR+4*i,4)} offset:{off}")
        a("s_waitcnt lgkmcnt(0)\ns_barrier")
    def a_q_prefetch(self, part):
        a = self.a
        nt = self.opt.get("q_nt", "nt")
        first, per, n = ((1536, 64, 1), (768, 96, 2), (0, 96, 3))[part]
        a(f"s_and_b32 s49, s{S_OCT}, 7\ns_mul_i32 s49, s49, {per}\ns_mul_i32 s52, s{S_WAVE}, {(8, 12, 24)[part]}\ns_add_u32 s49, s49, s52\ns_add_u32 s49, s49, {first}\ns_mul_i32 s49, s49, 1152")
        a(f"s_lshr_b32 s52, s{S_OCT}, 3\ns_lshl_b32 s52, s52, 7\ns_add_u32 s49, s49, s52")
        a(f"v_lshrrev_b32 v{T0}, 3, v1\nv_mul_u32_u24 v{T0}, 1152, v{T0}\nv_and_b32 v{T1}, 7, v1\nv_lshl_add_u32 v{T0}, v{T1}, 4, v{T0}\nv_add_u32 v{T2}, s49, v{T0}")
    def a_q_prefetch_issue(self, part):
        a = self.a
        nt = self.opt.get("q_nt", "nt")
        n = (1, 2, 3)[part]
        for i in range(n):
            a(f"global_load_dwordx4 {vr(QR,4)}, v{T2}, {sr(Q,2)} {nt}")
            if i + 1 < n: a(f"v_add_u32 v{T2}, {(4 if part == 1 else 8)*1152}, v{T2}")
    def a_q_loads(self, part):
        a = self.a
        if part < 2:
            a(f"global_load_dwordx4 {vr(QR,4)}, v{QA}, {sr(Q,2)}")
        else:
            for i in range(3):
                a(f"global_load_dwordx4 {vr(QR+4*i,4)}, v{QA}, {sr(Q,2)}")
                if i < 2: a(f"v_add_u32 v{QA}, {256*1152}, v{QA}")
    def a_job(self, z, q, t, o, addr):
        a = self.a
        for i in range(4):
            a(f"v_lshlrev_b32 v{t}, 16, v{z+i}\nv_and_b32 v{t+1}, 0xffff0000, v{z+i}\nv_lshlrev_b32 v{t+2}, 16, v{q+i}\nv_and_b32 v{t+3}, 0xffff0000, v{q+i}")
            a(f"v_pk_mul_f32 {vr(t,2)}, {vr(t,2)}, {vr(t+2,2)}\nv_cvt_pk_bf16_f32 v{o+i}, v{t}, v{t+1}")
        a(f"global_store_dwordx4 v{addr}, {vr(o,4)}, {sr(OUT,2)}")
    def a_conv(self, part, pre_a):
        a = self.a
        passes, res, acc = self.plan(part)
        ops = []
        for pi, ps in enumerate(passes):
            for rho in range(8):
                for (o, j, m) in ps:
                    ops.append((pi, rho, o, j, m))
        def akey(op):
            pi, rho, o, j, m = op
            if (o, j) in res: return None
            return ("A", pi, o, j, rho)
        def bkey(op):
            pi, rho, o, j, m = op
            return ("B", pi, o, m, rho)
        firstuse, last = [], {}
        for i, op in enumerate(ops):
            for k in (akey(op), bkey(op)):
                if k is None: continue
                if k not in last: firstuse.append(k)
                last[k] = i
        free = [SLOT + 4 * i for i in range(12)]
        st = {"issued": 0, "done": 0}
        where, ready = {}, {}
        pend = list(firstuse)
        head = pend[:12]
        def issue(k):
            d = free.pop(0); where[k] = d; pend.remove(k)
            n = self.rd_a(d, k[2], k[3], k[4]) if k[0] == "A" else self.rd_b(d, k[2], k[3], k[4])
            st["issued"] += n; ready[k] = st["issued"]
        for k in head:
            if k[0] == "A": issue(k)
        def body(mid):
            st["done"] = st["issued"]
            for k in head:
                if k[0] == "B": issue(k)
            def wait(n):
                if n > st["done"]:
                    c = min(st["issued"] - n, 15)
                    a(f"s_waitcnt lgkmcnt({c})"); st["done"] = st["issued"] - c
            npass0 = 8 * len(passes[0])
            for i, op in enumerate(ops):
                pi, rho, o, j, m = op
                ka, kb = akey(op), bkey(op)
                wait(max(ready[kb], ready[ka] if ka else 0))
                ra = where[ka] if ka else res[(o, j)] + 4 * rho
                c = acc[(o, j + m)]
                a(f"v_mfma_f32_16x16x32_bf16 {vr(c,4)}, {vr(ra,4)}, {vr(where[kb],4)}, {vr(c,4)}")
                if j == 0 and rho == 0:
                    a(f"v_mfma_f32_16x16x32_bf16 {vr(c,4)}, {vr(DT+4*o,4)}, {vr(where[kb],4)}, {vr(c,4)}")
                for k in (kb, ka):
                    if k and last[k] == i:
                        free.append(where[k])
                        if pend: issue(pend[0])
                if i == len(ops) * self.opt.get("qpos", 60) // 100: self.a_q_loads(part)
                if len(passes) > 1:
                    if i == npass0 + 2:
                        c = acc[(0, 3)]
                        a(f"v_cvt_pk_bf16_f32 v28, v{c}, v{c+1}\nv_cvt_pk_bf16_f32 v29, v{c+2}, v{c+3}\nds_write_b64 v{ZW}, v[28:29] offset:{768*3}")
                        st["issued"] += 1; st["z"] = st["issued"]
                    if i == npass0 + 6:
                        wait(st["z"]); mid(st)
        return body
    def a_part(self, part):
        a = self.a
        Lp = self.lab("Lpub")
        late = (1, 0) if part == 0 else (2,)
        nl = len(late)
        for p in late: self.a_h_load(p, True)
        self.stamp(1)
        a("s_waitcnt lgkmcnt(0)")
        self.tag_make()
        self.a_setup_part(part)
        order = (3, 2, 1, 0) if part == 0 else (0, 2, 1)
        npre = min(self.opt.get("npre", 2), 2 if part == 0 else 1)
        for i in range(npre):
            a(f"s_waitcnt vmcnt({(1-i if part == 0 else 0)+3+nl})"); self.a_hprep_pass(part, order[i], i & 1)
        a(f"s_mov_b32 s75, 0\ns_waitcnt vmcnt({nl})")
        self.arrive(Lp)
        self.flag_store(True)
        a(f"s_mov_b32 s75, 1\n{Lp}:\ns_mov_b64 exec, -1")
        self.stamp(2)
        for i in range(npre, len(order)):
            if order[i] == late[0]: a(f"s_cmp_eq_u32 s75, 1\ns_waitcnt vmcnt(2)\ns_cbranch_scc1 {Lp}w\ns_waitcnt vmcnt(0)\n{Lp}w:")
            self.a_hprep_pass(part, order[i], i & 1)
        self.a_q_prefetch(part)
        awp = self.opt.get("awp", 1)
        nfirst = self.opt.get("nfirst", 0 if awp else 2)
        a("s_waitcnt lgkmcnt(0)")
        self.a_resident(part, range(nfirst))
        self.stamp(3)
        self.poll(FLA, True, bool(awp))
        self.stamp(4)
        hold = {}
        def between():
            if awp and part == 0:
                self.a_resident(part, range(nfirst, 2))
                a("s_waitcnt lgkmcnt(0)\ns_barrier")
                self.a_resident(part, range(max(nfirst, 2), 4))
            else:
                self.a_resident(part, range(nfirst, 4))
            hold["body"] = self.a_conv(part, True)
        self.a_stage_kv(part, between)
        self.stamp(5)
        if self.opt.get("qw", 1): self.a_q_prefetch_issue(part)
        def mid(st):
            L = self.lab("Lmid")
            a(f"s_barrier\ns_cmp_lt_u32 s{S_WAVE}, 4\ns_cbranch_scc1 {L}")
            a(f"v_add_u32 v{T0}, {-512*1152 & 0xffffffff}, v{QA}\ns_waitcnt vmcnt(0)\nglobal_load_dwordx4 {vr(QR+4,4)}, v{T0}, {sr(Q,2)}")
            a(f"ds_read_b64_tr_b16 v[28:29], v{TR0} offset:{768*2}\nds_read_b64_tr_b16 v[30:31], v{TR1} offset:{768*2}")
            a(f"v_add_u32 v{T0}, {-512*2304 & 0xffffffff}, v{OA}\ns_waitcnt vmcnt(0) lgkmcnt(0)")
            self.a_job(28, QR + 4, 32, 36, T0)
            a(f"{L}:")
        hold["body"](mid)
        self.stamp(6)
        passes, res, acc = self.plan(part)
        if part < 2:
            for i in range(2):
                c = ACC + 4 * i
                a(f"v_cvt_pk_bf16_f32 v{SLOT+2*i}, v{c}, v{c+1}\nv_cvt_pk_bf16_f32 v{SLOT+1+2*i}, v{c+2}, v{c+3}\nds_write_b64 v{ZW}, {vr(SLOT+2*i,2)} offset:{768*i}")
            a("s_waitcnt lgkmcnt(0)\ns_barrier")
            a(f"ds_read_b64_tr_b16 {vr(SLOT+4,2)}, v{TR0}\nds_read_b64_tr_b16 {vr(SLOT+6,2)}, v{TR1}")
            a(f"s_waitcnt vmcnt({0 if part == 0 else 1}) lgkmcnt(0)" if False else "s_waitcnt vmcnt(0) lgkmcnt(0)")
            self.a_job(SLOT + 4, QR, SLOT + 8, SLOT + 12, OA)
        else:
            for t in range(3):
                c0, c1 = acc[(0, t)], acc[(1, t)]
                for r in range(4): a(f"v_cvt_pk_bf16_f32 v{SLOT+4*t+r}, v{c0+r}, v{c1+r}")
                a(f"ds_write_b128 v{ZW}, {vr(SLOT+4*t,4)} offset:{1280*t}")
            a("s_waitcnt lgkmcnt(0)\ns_barrier")
            for t in range(3):
                a(f"ds_read_b64_tr_b16 {vr(SLOT+12+4*t,2)}, v{TR0} offset:{1280*t}\nds_read_b64_tr_b16 {vr(SLOT+14+4*t,2)}, v{TR1} offset:{1280*t}")
            a("s_waitcnt vmcnt(0)")
            for t in range(3):
                a(f"s_waitcnt lgkmcnt({4-2*t})")
                self.a_job(SLOT + 12 + 4 * t, QR + 4 * t, SLOT + 24, SLOT + 28 + 4 * t, OA)
                if t < 2: a(f"v_add_u32 v{OA}, {256*2304}, v{OA}")
        a("s_branch L_fin")
    def role_a(self):
        a = self.a
        self.a_addr()
        a("s_cmp_lt_u32 s78, 18\ns_cbranch_scc0 L_an0")
        self.a_kv_loads()
        a(f"L_an0:\ns_cmp_eq_u32 s{S_PART}, 0\ns_barrier\ns_cbranch_scc1 L_ah0")
        self.a_h_load(1); self.a_h_load(0)
        a("s_branch L_ah1\nL_ah0:")
        self.a_h_load(3); self.a_h_load(2)
        a("L_ah1:")
        self.a_setup0()
        self.a_setup()
        a("s_cmp_lt_u32 s78, 18\ns_cbranch_scc0 L_an1")
        self.a_p1_compute(3)
        a(f"s_branch L_an2\nL_an1:\nglobal_load_dword v254, v{FLA}, {sr(WS,2)} {self.opt.get('fl_nt', 'sc1')}\nglobal_load_dword v254, v{FLA}, {sr(WS,2)} {self.opt.get('fl_nt', 'sc1')}\nL_an2:")
        a(f"s_cmp_eq_u32 s{S_PART}, 1\ns_cbranch_scc1 L_aq\ns_cmp_eq_u32 s{S_PART}, 2\ns_cbranch_scc1 L_al")
        self.a_part(0)
        a("L_aq:"); self.a_part(1)
        a("L_al:"); self.a_part(2)

    def trig_setup(self, sX, mul, mask, special, scale):
        a = self.a
        a(f"v_lshl_add_u32 v22, s{sX}, 4, v2\nv_lshrrev_b32 v20, 1, v22\nv_and_b32 v21, 1, v2\nv_cvt_f32_u32 v21, v21\nv_mul_f32 v21, {f32(-0.25)}, v21\nv_cmp_eq_u32 vcc, 1, v22")
        if mul != 1: a(f"v_mul_u32_u24 v20, {mul}, v20\nv_and_b32 v20, {mask}, v20")
        a(f"v_cndmask_b32_e64 v20, v20, {special}, vcc\nv_cndmask_b32_e64 v21, v21, 0, vcc")
        a(f"v_cvt_f32_u32 v20, v20\nv_mul_f32 v20, {f32(scale)}, v20")
    def b_x_loads(self):
        a = self.a
        nt = self.opt.get("x_nt", "nt")
        a(f"v_lshrrev_b32 v4, 4, v0\nv_and_b32 v5, 15, v0\nv_lshlrev_b32 v6, 6, v4\nv_add_u32 v6, s{S_J}, v6\nv_mul_u32_u24 v6, 1152, v6\nv_lshl_add_u32 v6, v5, 3, v6")
        a("s_waitcnt lgkmcnt(0)")
        for p in range(9):
            a(f"global_load_dwordx2 {vr(32+2*p,2)}, v6, {sr(X,2)} offset:{128*p} {nt}")
    def b_p1(self):
        a = self.a
        teams = self.opt.get("teams", 0)
        self.tag_load()
        WA = 200
        a("v_lshrrev_b32 v7, 1, v5\nv_and_b32 v8, 15, v4\nv_xor_b32 v8, v8, v7\nv_lshlrev_b32 v8, 4, v8\nv_lshl_add_u32 v8, v7, 8, v8\nv_and_b32 v7, 1, v5\nv_lshl_add_u32 v8, v7, 3, v8\nv_lshrrev_b32 v7, 4, v4\nv_lshl_add_u32 v8, v7, 11, v8")
        a(f"v_lshlrev_b32 v7, 2, v5\nv_mul_u32_u24 v9, 57, v7\nv_lshrrev_b32 v9, 9, v9\nv_mul_u32_u24 v9, 9, v9\nv_sub_u32 v7, v7, v9\nv_lshl_add_u32 v{WA}, v7, 12, v8")
        for s in range(1, 9):
            a(f"v_add_u32 v9, {4096*s}, v{WA}\nv_add_u32 v10, {(4096*s-36864) & 0xffffffff}, v{WA}\nv_min_u32 v{WA+s}, v9, v10")
        a("v_and_b32 v2, 15, v1\nv_lshrrev_b32 v3, 4, v1")
        a(f"s_lshr_b32 s50, s{S_WAVE}, 1\ns_and_b32 s51, s{S_WAVE}, 1")
        a(f"s_and_b32 s52, s{S_WAVE}, 2\ns_lshr_b32 s53, s{S_WAVE}, 2\ns_add_u32 s52, s52, s53")
        self.trig_setup(50, 57, 63, 32, 1.0 / 64)
        a("v_lshlrev_b32 v22, 3, v3\nv_cvt_f32_u32 v22, v22\nv_fma_f32 v21, v20, v22, v21")
        a(f"v_mul_f32 v23, {f32(24.0)}, v20")
        for kk in range(2):
            for i in range(4):
                a(f"v_cos_f32 v24, v21\nv_add_f32 v21, v21, v20\nv_cos_f32 v25, v21\nv_add_f32 v21, v21, v20\nv_cvt_pk_bf16_f32 v{68+4*kk+i}, v24, v25")
            if kk == 0: a("v_add_f32 v21, v21, v23")
        self.trig_setup(51, 1, 0, 16, 1.0 / 32)
        a("v_lshlrev_b32 v22, 2, v3\nv_cvt_f32_u32 v22, v22\nv_fma_f32 v21, v20, v22, v21")
        a(f"v_mul_f32 v23, {f32(12.0)}, v20")
        for i in range(4):
            a(f"v_cos_f32 v24, v21\nv_add_f32 v21, v21, v20\nv_cos_f32 v25, v21\nv_add_f32 v21, v21, v20\nv_cvt_pk_bf16_f32 v{76+i}, v24, v25")
            if i == 1: a("v_add_f32 v21, v21, v23")
        a("s_lshl_b32 s49, s51, 11\nv_xor_b32 v10, v2, v3\nv_lshlrev_b32 v10, 4, v10\nv_lshl_add_u32 v10, v3, 8, v10\nv_add_u32 v10, s49, v10\nv_xor_b32 v11, 64, v10\nv_add_u32 v11, 1024, v11")
        a(f"v_lshl_add_u32 v12, s51, 4, v2\nv_mul_u32_u24 v12, 1288, v12\nv_add_u32 v12, {L2}, v12")
        a("s_lshl_b32 s49, s50, 3\nv_lshrrev_b32 v13, 1, v3\nv_mul_u32_u24 v13, 320, v13\nv_and_b32 v14, 1, v3\nv_lshl_add_u32 v13, v14, 2, v13\nv_add3_u32 v13, v13, v12, s49")
        a("s_sub_u32 s49, 36, s49\nv_lshlrev_b32 v14, 1, v3\nv_sub_u32 v14, s49, v14\nv_mul_u32_u24 v9, 57, v14\nv_lshrrev_b32 v9, 9, v9\nv_mul_u32_u24 v9, 9, v9\nv_sub_u32 v14, v14, v9\nv_lshlrev_b32 v14, 5, v14\nv_add_u32 v116, v14, v13")
        for e in range(1, 9):
            a(f"v_add_u32 v9, {32*e}, v14\nv_add_u32 v15, {(32*e-288) & 0xffffffff}, v14\nv_min_u32 v9, v9, v15\nv_add_u32 v{116+e}, v9, v13")
        a(f"v_lshrrev_b32 v14, 2, v1\nv_mul_u32_u24 v14, 1288, v14\nv_and_b32 v9, 3, v1\nv_mul_u32_u24 v15, 320, v9\ns_lshl_b32 s49, s52, 4\ns_add_u32 s49, s49, {L2}\nv_add3_u32 v14, v14, v15, s49")
        a(f"v_lshrrev_b32 v15, 2, v2\nv_lshl_add_u32 v15, s51, 2, v15\nv_mul_u32_u24 v15, {19*16384}, v15\nv_lshl_add_u32 v15, v3, 6, v15\nv_lshl_add_u32 v15, v9, 4, v15")
        a(f"s_lshl_b32 s49, s52, 14\ns_lshl_b32 s54, s{S_J}, 8\ns_add_u32 s49, s49, s54\ns_add_u32 s49, s49, {VOFF}\nv_add_u32 v15, s49, v15")
        c = lambda k: math.cos(2 * math.pi * k / 9); s_ = lambda k: math.sin(2 * math.pi * k / 9)
        CN = {"c1": c(1), "c2": c(2), "c4": c(4), "s1": s_(1), "s2": s_(2), "s3": s_(3), "s4": s_(4), "mh": -0.5}
        CR = {}
        for i, (k, v) in enumerate(CN.items()):
            CR[k] = sr(60 + 2 * i, 2)
            a(f"s_mov_b32 s{60+2*i}, {f32(v)}\ns_mov_b32 s{61+2*i}, s{60+2*i}")
        a("v_mov_b32 v9, 0xffff")
        a("s_waitcnt vmcnt(0)")
        self.stamp(1)
        for s in range(9):
            a(f"v_bfi_b32 v{50+2*s}, v9, v{32+2*s}, v{32+2*((s-1)%9)}\nv_bfi_b32 v{51+2*s}, v9, v{33+2*((s-2)%9)}, v{33+2*((s-3)%9)}")
            a(f"ds_write_b64 v{WA+s}, {vr(50+2*s,2)}")
        a("s_waitcnt lgkmcnt(0)\ns_barrier")
        self.tag_make()
        if self.opt.get("bprio", 1): a("s_setprio 1")
        order = [1, 8, 2, 7, 4, 5, 3, 6, 0]
        for i, b in enumerate(order):
            a(f"ds_read_b128 {vr(128+8*i,4)}, v10 offset:{4096*b}\nds_read_b128 {vr(132+8*i,4)}, v11 offset:{4096*b}")
        for i, b in enumerate(order):
            a(f"s_waitcnt lgkmcnt({min(15, 17-2*i)})")
            a(f"v_mfma_f32_16x16x32_bf16 {vr(80+4*b,4)}, v[68:71], {vr(128+8*i,4)}, 0")
            a(f"s_waitcnt lgkmcnt({min(15, 16-2*i)})")
            a(f"v_mfma_f32_16x16x32_bf16 {vr(80+4*b,4)}, v[72:75], {vr(132+8*i,4)}, {vr(80+4*b,4)}")
        if teams:
            a("s_cmp_eq_u32 s53, 0\ns_cbranch_scc1 L_bt0\ns_barrier\nL_bt0:")
        def P(r): return vr(r, 2)
        add = lambda d, x, y: a(f"v_pk_add_f32 {P(d)}, {P(x)}, {P(y)}")
        sub = lambda d, x, y: a(f"v_pk_add_f32 {P(d)}, {P(x)}, {P(y)} neg_lo:[0,1] neg_hi:[0,1]")
        def fma(d, x, k, y, nk=False, ny=False):
            m = ""
            if nk or ny: m = f" neg_lo:[0,{int(nk)},{int(ny)}] neg_hi:[0,{int(nk)},{int(ny)}]"
            a(f"v_pk_fma_f32 {P(d)}, {P(x)}, {CR[k]}, {P(y)}{m}")
        ZR = [[0] * 9, [0] * 9]
        gens = []
        for h in range(2):
            g = lambda b, h=h: 80 + 4 * b + 2 * h
            gens.append((g, tuple(128 + 44 * h + 2 * i for i in range(22))))
        def both(fn):
            for h in range(2): fn(gens[h][0], *gens[h][1])
        both(lambda g, a1, a2, a3, a4, b1, b2, b3, b4, *r: (add(a1, g(1), g(8)), sub(b1, g(1), g(8))))
        both(lambda g, a1, a2, a3, a4, b1, b2, b3, b4, *r: (add(a2, g(2), g(7)), sub(b2, g(2), g(7))))
        both(lambda g, a1, a2, a3, a4, b1, b2, b3, b4, *r: (add(a4, g(4), g(5)), sub(b4, g(4), g(5))))
        both(lambda g, a1, a2, a3, a4, b1, b2, b3, b4, *r: (add(a3, g(3), g(6)), sub(b3, g(3), g(6))))
        def body(g, a1, a2, a3, a4, b1, b2, b3, b4, t, u, w, p, q, C0, C1, C2, C3, C4, S1, S2, S3, S4):
            add(t, a1, a2); sub(p, a1, a4); sub(q, a2, a4); add(t, t, a4); add(u, g(0), a3); fma(w, a3, "mh", g(0))
            add(C0, u, t); fma(C3, t, "mh", u)
            fma(C1, p, "c1", w); fma(C2, p, "c2", w); fma(C4, p, "c4", w)
            fma(C1, q, "c2", C1); fma(C2, q, "c4", C2); fma(C4, q, "c1", C4)
            sub(S3, b1, b2); add(p, b1, b2); add(q, b2, b4); a(f"v_pk_mul_f32 {P(b3)}, {P(b3)}, {CR['s3']}"); add(S3, S3, b4)
            fma(S1, p, "s1", b3); fma(S2, p, "s2", b3, ny=True); fma(S4, p, "s4", b3)
            a(f"v_pk_mul_f32 {P(S3)}, {P(S3)}, {CR['s3']}")
            fma(S1, q, "s4", S1); fma(S2, q, "s1", S2, nk=True); fma(S4, q, "s2", S4, nk=True)
        both(body)
        Ls = self.lab("Lsp")
        r0 = gens[0][1]; Cs = r0[13:18]; Ss = [None] + list(r0[18:22])
        a(f"s_cmp_lg_u32 s50, 0\ns_cbranch_scc1 {Ls}\ns_mov_b64 exec, 0xffff")
        for e in range(9):
            k = e if e <= 4 else 9 - e
            src = "0" if e == 0 else (f"v{Ss[k]+1}" if e <= 4 else f"-v{Ss[k]+1}")
            m = (e + 4) % 9
            off = (m >> 2) * 320 + (36 + ((m >> 1) & 1)) * 8 + (m & 1) * 4
            a(f"v_cvt_pk_bf16_f32 v{16+e}, v{Cs[k]+1}, {src}\nds_write_b32 v12, v{16+e} offset:{off}")
        for k in range(5): a(f"v_mov_b32 v{Cs[k]+1}, 0")
        for k in range(1, 5): a(f"v_mov_b32 v{Ss[k]+1}, 0")
        a(f"s_mov_b64 exec, -1\n{Ls}:")
        for h in range(2):
            ZR[h][0] = gens[h][1][13]
            for k in range(1, 9): ZR[h][k] = 80 + 4 * k + 2 * h
        def combo(h, e):
            if e == 0: return
            r = gens[h][1]; C = r[13:18]; S = [None] + list(r[18:22])
            k = e if e <= 4 else 9 - e
            ng = "neg_lo:[0,1]" if e <= 4 else "neg_hi:[0,1]"
            a(f"v_pk_add_f32 {P(ZR[h][e])}, {P(C[k])}, {P(S[k])} op_sel:[0,1] op_sel_hi:[1,0] {ng}")
        for e in range(9):
            combo(0, e); combo(1, (e + 1) % 9)
            z0, z1 = ZR[0][e], ZR[1][(e + 1) % 9]
            a(f"v_cvt_pk_bf16_f32 v{32+2*e}, v{z0}, v{z1}\nv_cvt_pk_bf16_f32 v{33+2*e}, v{z0+1}, v{z1+1}")
            a(f"ds_write2_b32 v{116+e}, v{32+2*e}, v{33+2*e} offset0:0 offset1:160")
        a("s_waitcnt lgkmcnt(0)\ns_barrier")
        for r in range(5):
            for T in range(2):
                for h2 in range(2):
                    a(f"ds_read_b64_tr_b16 {vr(128+8*r+4*T+2*h2,2)}, v14 offset:{64*r+8*T+20608*h2}")
        Le = self.lab("Lse")
        def mf(r):
            a(f"s_waitcnt lgkmcnt({min(15, 18-4*r)})")
            a(f"v_mfma_f32_16x16x32_bf16 {vr(176+8*r,4)}, {vr(128+8*r,4)}, v[76:79], 0")
            a(f"s_waitcnt lgkmcnt({min(15, 16-4*r)})")
            a(f"v_mfma_f32_16x16x32_bf16 {vr(180+8*r,4)}, {vr(132+8*r,4)}, v[76:79], 0")
        mf(0); mf(1)
        for r in range(5):
            if r + 2 < 5: mf(r + 2)
            if r == 4: a(f"s_cmp_eq_u32 s52, 3\ns_cbranch_scc1 {Le}")
            for i in range(4): a(f"v_cvt_pk_bf16_f32 v{32+4*r+i}, v{176+8*r+2*i}, v{177+8*r+2*i}")
            a(f"global_store_dwordx4 v15, {vr(32+4*r,4)}, {sr(WS,2)} sc1")
            if r < 4: a("v_add_u32 v15, 0x10000, v15")
        a(f"{Le}:")
        if teams:
            a("s_cmp_eq_u32 s53, 0\ns_cbranch_scc0 L_bt1\ns_barrier\nL_bt1:")
    def b_p2_setup(self):
        a = self.a
        a("v_and_b32 v2, 15, v1\nv_lshrrev_b32 v3, 4, v1")
        a(f"s_lshr_b32 s52, s{S_WAVE}, 2\ns_lshl_b32 s53, s50, 1\ns_add_u32 s53, s53, s52")
        a(f"s_and_b32 s49, s{S_WAVE}, 3\ns_lshl_b32 s55, s49, 9\ns_add_u32 s55, s55, s53\ns_lshl_b32 s65, s52, 1")
        a(f"s_lshr_b32 s66, s49, 1\ns_mul_i32 s67, s66, {16-1024}\ns_add_u32 s67, s67, s55\ns_cmp_eq_u32 s53, 0\ns_cselect_b32 s54, 0, -1\ns_cselect_b32 s55, s67, s55\ns_cselect_b32 s65, s66, s65")
    def b_p2_trig(self):
        a = self.a
        a(f"v_lshl_add_u32 v56, v2, 5, s55\nv_cvt_f32_u32 v56, v56\nv_mul_f32 v56, {f32(1.0/2048)}, v56\nv_lshlrev_b32 v58, 3, v3\nv_cvt_f32_u32 v58, v58\nv_mul_f32 v57, v56, v58\nv_mul_f32 v59, {f32(24.0)}, v56")
        for kk in range(2):
            for i in range(4):
                d = 4 * kk + i
                a(f"v_cos_f32 v60, v57\nv_sin_f32 v62, v57\nv_add_f32 v57, v57, v56\nv_cos_f32 v61, v57\nv_sin_f32 v63, v57\nv_add_f32 v57, v57, v56")
                a(f"v_cvt_pk_bf16_f32 v{64+d}, v60, v61\nv_cvt_pk_bf16_f32 v{80+d}, v62, v63")
                a(f"v_mov_b32 v{88+d}, v{64+d}\nv_xor_b32 v{72+d}, 0x80008000, v{80+d}")
            if kk == 0: a("v_add_f32 v57, v57, v59")
        a("s_cmp_lg_u32 s53, 0\ns_cbranch_scc1 L_bm")
        for d in range(8): a(f"v_mov_b32 v{72+d}, 0\nv_mov_b32 v{88+d}, 0")
        a("L_bm:")
    def b_p2_setup2(self):
        a = self.a
        a(f"s_mul_i32 s49, s50, 19\ns_lshl_b32 s60, s51, 1\ns_add_u32 s60, s60, s49\ns_lshl_b32 s60, s60, 14\ns_add_u32 s60, s60, {VOFF}")
        a("s_add_u32 s61, s60, 8192\ns_add_u32 s62, s60, 16384\ns_add_u32 s63, s60, 24576")
        a(f"s_add_u32 s49, s49, 18\ns_lshl_b32 s64, s49, 14\ns_add_u32 s64, s64, {VOFF}\ns_lshr_b32 s49, s51, 2\ns_lshl_b32 s49, s49, 6\ns_add_u32 s64, s64, s49\ns_and_b32 s49, s51, 3\ns_lshl_b32 s49, s49, 2\ns_add_u32 s64, s64, s49")
        a("v_lshlrev_b32 v4, 4, v0")
        a(f"v_bfe_u32 v9, v1, 2, 2\nv_bfe_u32 v10, v1, 4, 1\nv_lshl_add_u32 v9, v10, 5, v9\ns_lshl_b32 s49, s{S_WAVE}, 2\nv_add_u32 v9, s49, v9\nv_lshlrev_b32 v27, 7, v9\nv_add_u32 v27, {FLAGOFF+FLAG2+32*128}, v27")
        a("v_and_b32 v10, 3, v0\nv_lshlrev_b32 v5, 8, v9\nv_lshl_add_u32 v5, v10, 4, v5")
        def rho(dst, src, tmp):
            a(f"v_and_b32 v{dst}, 35, v{src}\nv_bfe_u32 v{tmp}, v{src}, 2, 1\nv_lshl_add_u32 v{dst}, v{tmp}, 4, v{dst}\nv_bfe_u32 v{tmp}, v{src}, 3, 2\nv_lshl_add_u32 v{dst}, v{tmp}, 2, v{dst}")
        rho(7, 9, 11)
        a(f"v_mul_u32_u24 v7, 544, v7\nv_lshl_add_u32 v7, v10, 3, v7\nv_add_u32 v7, {L3+512}, v7")
        a("v_lshrrev_b32 v9, 4, v0")
        rho(6, 9, 11)
        a(f"v_mul_u32_u24 v6, 544, v6\nv_lshl_add_u32 v6, v10, 5, v6\nv_bfe_u32 v11, v0, 2, 2\nv_lshl_add_u32 v6, v11, 7, v6\nv_and_b32 v11, 1, v11\nv_lshl_add_u32 v6, v11, 4, v6\nv_add_u32 v6, {L3}, v6\nv_xor_b32 v12, 16, v6")
        a("s_lshl_b32 s49, s65, 3\ns_lshl_b32 s65, s65, 5")
        a(f"v_lshrrev_b32 v9, 2, v1\nv_mul_u32_u24 v9, 544, v9\nv_add_u32 v9, {L3}, v9\nv_lshl_add_u32 v8, v10, 3, v9\nv_add_u32 v8, s65, v8\nv_xor_b32 v13, 16, v8")
        a("v_add_u32 v9, s49, v9\nv_cmp_eq_u32 vcc, 3, v10")
        for comp in range(2):
            for cs in range(2):
                a(f"v_add_u32 v11, {8+256*comp+32*cs}, v8\nv_add_u32 v28, {512+8*cs}, v9\nv_cndmask_b32 v{16+2*comp+cs}, v11, v28, vcc")
        a(f"s_lshl_b32 s49, s{S_WAVE}, 12\nv_lshrrev_b32 v11, 1, v2\nv_add_u32 v11, v11, v3\nv_and_b32 v11, 3, v11\nv_lshlrev_b32 v11, 4, v11\nv_lshl_add_u32 v20, v2, 6, v11\nv_add_u32 v20, s49, v20")
        a("v_lshrrev_b32 v9, 2, v1\nv_lshrrev_b32 v11, 3, v1\nv_add_u32 v21, v11, v10\nv_and_b32 v21, 3, v21\nv_sub_u32 v22, v11, v10\nv_add_u32 v22, 3, v22\nv_and_b32 v22, 3, v22")
        a("v_lshlrev_b32 v11, 6, v9\nv_add_u32 v11, s49, v11\nv_lshl_add_u32 v21, v21, 4, v11\nv_lshl_add_u32 v22, v22, 4, v11")
        a(f"s_movk_i32 s68, 2304\nv_lshl_add_u32 v9, v9, 5, s55\nv_sub_u32 v11, 2048, v9\nv_mov_b32 v28, 1024\nv_cmp_eq_u32 vcc, 0, v9\nv_lshlrev_b32 v10, 4, v10\nv_add_u32 v10, 1152, v10\nv_cndmask_b32 v11, v11, v28, vcc\nv_mad_u32_u24 v23, v9, s68, v10\nv_mad_u32_u24 v24, v11, s68, v10")
        a("s_lshl_b32 s66, s51, 7\ns_sub_u32 s67, 1088, s66\nv_add_u32 v25, s67, v23\nv_add_u32 v26, s67, v24\nv_add_u32 v23, s66, v23\nv_add_u32 v24, s66, v24")
        if not self.opt.get("bwp", 1): a(f"v_lshlrev_b32 v27, 7, v1\nv_add_u32 v27, {FLAGOFF+FLAG2+32*128}, v27")
    def b_p2(self):
        a = self.a
        ld = [(0, 60, 6, 0), (1, 62, 12, 0), (2, 61, 6, 17408), (3, 63, 12, 17408)]
        a(f"buffer_load_dword v112, v5, {sr(SRD_WS,4)}, s64 offen sc1")
        for i, s, d, o in ld:
            a(f"buffer_load_dwordx4 {vr(96+4*i,4)}, v4, {sr(SRD_WS,4)}, s{s} offen sc1")
        a("s_waitcnt vmcnt(4)\nds_write_b32 v7, v112")
        for i, s, d, o in ld:
            a(f"s_waitcnt vmcnt({3-i})\nds_write_b128 v{d}, {vr(96+4*i,4)} offset:{o}")
        a("s_waitcnt lgkmcnt(0)\ns_barrier")
        self.stamp(5)
        M = {(0, 0): 64, (0, 1): 72, (1, 0): 80, (1, 1): 88}
        AC = {(0, 0): 32, (0, 1): 36, (0, 2): 40, (1, 0): 44, (1, 1): 48, (1, 2): 52}
        jobs = [(comp, cs, kk, T) for kk in range(2) for cs in range(2) for comp in range(2) for T in range(3)]
        D = 7
        def rd(i):
            comp, cs, kk, T = jobs[i]
            for h in range(2):
                if T < 2: a(f"ds_read_b64_tr_b16 {vr(128+4*i+2*h,2)}, v{(8,13)[T]} offset:{kk*17408+h*8704+comp*256+T*128+cs*32}")
                else: a(f"ds_read_b64_tr_b16 {vr(128+4*i+2*h,2)}, v{16+2*comp+cs} offset:{kk*17408+h*8704}")
        for i in range(D): rd(i)
        first = set()
        for i, (comp, cs, kk, T) in enumerate(jobs):
            rem = min(len(jobs), i + D) - i - 1
            a(f"s_waitcnt lgkmcnt({2*rem})")
            c = AC[(comp, T)]
            src = vr(c, 4) if (comp, T) in first else "0"
            first.add((comp, T))
            a(f"v_mfma_f32_16x16x32_bf16 {vr(c,4)}, {vr(128+4*i,4)}, {vr(M[(comp,cs)]+4*kk,4)}, {src}")
            if i + D < len(jobs): rd(i + D)
        self.stamp(6)
        a("v_cmp_eq_u32 vcc, 3, v3\nv_cndmask_b32 v52, v52, v53, vcc")
        for i in range(0, 8, 2):
            a(f"v_pk_add_f32 {vr(96+i,2)}, {vr(32+i,2)}, {vr(44+i,2)} neg_lo:[0,1] neg_hi:[0,1]\nv_pk_add_f32 {vr(106+i,2)}, {vr(32+i,2)}, {vr(44+i,2)}")
        a("v_sub_f32 v104, v40, v52\nv_add_f32 v114, v40, v52")
        Dm, Dp = 96, 106
        for x, (b, rev) in enumerate(((Dm, 0), (Dp, 1), (Dp, 0), (Dm, 1))):
            if x == 2:
                a("s_cmp_lg_u32 s55, 0\ns_cbranch_scc1 L_nz")
                for i in range(4): a(f"v_mov_b32 v{56+i}, 0xbf803f80")
                for T in range(3):
                    a(f"v_mfma_f32_16x16x32_bf16 {vr(32+4*T,4)}, {vr(128+4*jobs.index((0,0,0,T)),4)}, v[56:59], 0")
                for T in range(3):
                    a(f"v_mfma_f32_16x16x32_bf16 {vr(32+4*T,4)}, {vr(128+4*jobs.index((0,0,1,T)),4)}, v[56:59], {vr(32+4*T,4)}")
                a("s_mov_b32 exec_lo, 0x10001\ns_mov_b32 exec_hi, 0x10001\ns_nop 7")
                for i in range(9): a(f"v_mov_b32 v{Dm+i}, v{32+i}\nv_mov_b32 v{Dp+i}, v{32+i}")
                a("s_mov_b64 exec, -1\nL_nz:")
            for i in range(4):
                if rev: a(f"v_cvt_pk_bf16_f32 v{224+4*x+i}, v{b+8-2*i}, v{b+7-2*i}")
                else: a(f"v_cvt_pk_bf16_f32 v{224+4*x+i}, v{b+2*i}, v{b+2*i+1}")
            a(f"ds_write_b128 v20, {vr(224+4*x,4)} offset:{L4+1024*x}")
        a("s_waitcnt lgkmcnt(0)")
        for x in range(4):
            a(f"ds_read_b128 {vr(144+4*x,4)}, v{21+(x&1)} offset:{L4+1024*x}")
        so = self.opt.get("b_out", "")
        ad = (23, 25, 24, 26)
        for x in range(4):
            a(f"s_waitcnt lgkmcnt({3-x})\nglobal_store_dwordx4 v{ad[x]}, {vr(144+4*x,4)}, {sr(OUT,2)} {so}")
    def role_b(self):
        a = self.a
        a("L_b1:"); self.b_p1()
        a("s_mov_b32 s78, 1\ns_mov_b32 s50, s48\ns_sub_u32 s51, s3, 4\ns_cmp_ge_u32 s51, 4\ns_addc_u32 s51, s51, 0\ns_branch L_b2go")
        if self.opt.get("only") == "A": a("L_b2:\ns_branch L_end\nL_b2x:")
        a(("L_b2y" if self.opt.get("only") == "A" else "L_b2") + ":\ns_mov_b32 s78, 0\ns_sub_u32 s50, s48, 5\ns_lshl_b32 s50, s50, 2\ns_add_u32 s50, s50, s3\ns_mov_b32 s51, 4")
        self.tag_load(); a("s_waitcnt lgkmcnt(0)\ns_barrier"); self.tag_make()
        a("L_b2go:")
        self.stamp(2)
        a("s_setprio 0")
        self.srd(SRD_WS, WS, WSBYTES)
        self.b_p2_setup()
        bo = self.opt.get("bord", 2)
        if bo in (1, 3): self.b_p2_setup2()
        if bo in (2, 3): self.b_p2_trig()
        a("s_waitcnt vmcnt(0)")
        self.arrive("L_bpub")
        self.flag_store(False)
        a("L_bpub:\ns_mov_b64 exec, -1")
        self.stamp(3)
        if bo in (0, 2): self.b_p2_setup2()
        if self.opt.get("tlb", 1): a(f"global_load_dword v253, v23, {sr(OUT,2)}\nglobal_load_dword v253, v24, {sr(OUT,2)}") if False else None
        if bo in (0, 1): self.b_p2_trig()
        self.poll(27, False, bool(self.opt.get("bwp", 1)))
        self.stamp(4)
        self.b_p2()

    def build(self):
        a = self.a
        hdr = open("cdna_kernels/" + NAME + ".s.ref").read().split("\n")
        head = [l for l in hdr if l.startswith(";") and "@launch" not in l and "Override" not in l and "grid=ceil" not in l][:15]
        kn = NAME + "_kernel"
        head += [f"; @launch grid=({NWG},1,1) block=(512,1,1) lds={LDS_BYTES}"]
        a('.amdgcn_target "amdgcn-amd-amdhsa--gfx950"\n.text')
        self.entry(kn, self.opt.get("codebytes", 20480))
        self.role_a()
        self.misc()
        self.role_b()
        a("L_fin:"); self.dump_stamps()
        a("L_end:\ns_endpgm\n.fill 64, 4, 0xbf800000")
        a(f""".section .rodata,"a"
.p2align 6
.amdhsa_kernel {kn}
.amdhsa_next_free_vgpr 256
.amdhsa_next_free_sgpr 102
.amdhsa_accum_offset 256
.amdhsa_group_segment_fixed_size 0
.amdhsa_kernarg_size 112
.amdhsa_user_sgpr_count 2
.amdhsa_user_sgpr_kernarg_segment_ptr 1
.amdhsa_system_sgpr_workgroup_id_x 1
.amdhsa_float_denorm_mode_32 3
.end_amdhsa_kernel""")
        if self.stamps:
            W = range(NWG)
            R = {"P": [w for w in W if 12 <= w >> 3 < 28 and (w >> 3) % 2 == 0], "Q": [w for w in W if 12 <= w >> 3 < 28 and (w >> 3) % 2 == 1],
                 "L1": [w for w in W if w >> 3 in (28, 29)], "L0": [w for w in W if w >> 3 in (30, 31)], "C8": [w for w in W if w >> 3 < 4 and w % 8 < 5],
                 "B1": [w for w in W if 4 <= w >> 3 < 12], "B2": [w for w in W if w >> 3 < 4 and w % 8 in (5, 6)], "CL": [7]}
            if self.opt.get("only") == "A": R = {k: v for k, v in R.items() if k[0] != "B"}
            if self.opt.get("only") == "B": R = {k: v for k, v in R.items() if k[0] == "B"}
            head.append("; ROLES " + json.dumps(R))
        return "\n".join(head) + "\n" + a.text()

if __name__ == "__main__":
    import argparse
    ap = argparse.ArgumentParser()
    ap.add_argument("--stamps", action="store_true"); ap.add_argument("-o", default="/dev/stdout")
    ap.add_argument("--opt", nargs="*", default=[])
    args = ap.parse_args()
    opt = {}
    for o in args.opt:
        k, v = o.split("=", 1)
        opt[k] = int(v) if v.lstrip("-").isdigit() else v
    open(args.o, "w").write(G(args.stamps, opt).build())
```
